```python
import torch

def _softmax(x, axis=-1):
    return torch.softmax(x, dim=axis)
def _gelu(x):
    return torch.nn.functional.gelu(x, approximate="tanh")
def _silu(x):
    return torch.nn.functional.silu(x)
def _sigmoid(x):
    return torch.sigmoid(x)
def _layernorm(x, axis=-1, eps=1e-5):
    m = x.mean(dim=axis, keepdim=True)
    v = x.var(dim=axis, keepdim=True, unbiased=False)
    return (x - m) / torch.sqrt(v + eps)
def _scatter_add(tgt, idx, src, axis=0):
    return tgt.clone().index_add_(axis, idx, src)
def _segment_sum(src, seg, n):
    out = torch.zeros((n,) + src.shape[1:], dtype=src.dtype)
    return out.index_add_(0, seg, src)
def _pad(x, pw):
    flat = tuple(v for pair in reversed(pw) for v in pair)
    return torch.nn.functional.pad(x, flat)

kernel_name = 'parallel_sum__sliding_block_cached__glu_gated_glu__decode'

def setup_inputs():

    _w = (lambda a: (lambda t: t.to(torch.bfloat16) if t.is_floating_point() else t)(torch.as_tensor(a)))
    def _A_setup():
        B, Sq, D = 1, 1, 640
        Hq, Hkv, Sk, Dh = 32, 32, 8192, 128
        assert Hq % Hkv == 0, (Hq, Hkv)
        return {
            "x": _w((lambda *s: torch.randn(*s, dtype=torch.bfloat16) * 0.05)(B, Sq, D)),
            "k_cache": _w((lambda *s: torch.randn(*s, dtype=torch.bfloat16) * 3.2)(B, Hkv, Sk, Dh)),
            "v_cache": _w((lambda *s: torch.randn(*s, dtype=torch.bfloat16) * 1.6)(B, Hkv, Sk, Dh)),
            "wq": _w((lambda *s: torch.randn(*s, dtype=torch.bfloat16) * 3.2)(D, Hq * Dh) * (D ** -0.5)),
            "wo": _w((lambda *s: torch.randn(*s, dtype=torch.bfloat16) * 1.6)(Hq * Dh, D) * ((Hq * Dh) ** -0.5)),
        }
    _A_in = _A_setup()

    def _B_setup():
        B, S, D, F = 1, 1, 640, 1728
        return {
            "x": _w((lambda *s: torch.randn(*s, dtype=torch.bfloat16) * 0.05)(B, S, D)),
            "w_gate": _w((lambda *s: torch.randn(*s, dtype=torch.bfloat16) * 0.05)(D, F)),
            "w_up": _w((lambda *s: torch.randn(*s, dtype=torch.bfloat16) * 0.05)(D, F)),
            "w_down": _w((lambda *s: torch.randn(*s, dtype=torch.bfloat16) * 0.05)(F, D)),
        }
    _B_in = _B_setup()

    return {
        "A_x": _A_in["x"],
        "A_k_cache": _A_in["k_cache"],
        "A_v_cache": _A_in["v_cache"],
        "A_wq": _A_in["wq"],
        "A_wo": _A_in["wo"],
        "B_x": _B_in["x"],
        "B_w_gate": _B_in["w_gate"],
        "B_w_up": _B_in["w_up"],
        "B_w_down": _B_in["w_down"],
    }

def reference(A_x, A_k_cache, A_v_cache, A_wq, A_wo, B_x, B_w_gate, B_w_up, B_w_down):
    def _A_ref(x, k_cache, v_cache, wq, wo):
        B, Sq, D = x.shape
        Hq, Dh = 32, 128
        Hkv, Sk = k_cache.shape[1], k_cache.shape[2]
        W = min(4096, max(256, Sk // 4))
        rep = Hq // Hkv
        q = (lambda x, *d: x.permute(*d))((x @ wq).reshape(B, Sq, Hq, Dh), 0, 2, 1, 3)
        k = (lambda x, n, axis: torch.repeat_interleave(x, n, dim=axis))(k_cache[:, :, Sk - W:, :], rep, axis=1)
        v = (lambda x, n, axis: torch.repeat_interleave(x, n, dim=axis))(v_cache[:, :, Sk - W:, :], rep, axis=1)
        scores = torch.einsum("bhqd,bhkd->bhqk", q, k) * (Dh ** -0.5)
        p = _softmax(scores, axis=-1)
        o = torch.einsum("bhqk,bhkd->bhqd", p, v)
        return (lambda x, *d: x.permute(*d))(o, 0, 2, 1, 3).reshape(B, Sq, Hq * Dh) @ wo

    def _B_ref(x, w_gate, w_up, w_down):
        g = torch.einsum("bsd,df->bsf", x, w_gate)
        u = torch.einsum("bsd,df->bsf", x, w_up)
        h = _sigmoid(g) * u
        return torch.einsum("bsf,fd->bsd", h, w_down)

    x = A_x
    xn = _layernorm(x, axis=-1)
    return x + _A_ref(xn, A_k_cache, A_v_cache, A_wq, A_wo) + _B_ref(xn, B_w_gate, B_w_up, B_w_down)
```

```python
import re
TRANS = ("v_exp_f32", "v_log_f32", "v_rcp_f32", "v_rsq_f32", "v_sqrt_f32", "v_sin_f32", "v_cos_f32")
def regs(tok):
    tok = tok.strip()
    tok = re.sub(r"^-|^abs\(|\)$|^\|", "", tok).rstrip("|")
    m = re.fullmatch(r"([vsa])\[(\d+):(\d+)\]", tok)
    if m: return {(m.group(1), i) for i in range(int(m.group(2)), int(m.group(3)) + 1)}
    m = re.fullmatch(r"([vsa])(\d+)", tok)
    if m: return {(m.group(1), int(m.group(2)))}
    if tok == "vcc": return {("s", "vcc")}
    if tok == "exec": return {("s", "exec")}
    return set()
class I:
    def __init__(s, line):
        s.line = line
        t = line.split(";")[0].strip()
        s.label = t.endswith(":")
        s.dir = t.startswith(".") or not t
        p = t.split(None, 1)
        s.op = p[0] if p else ""
        rest = p[1] if len(p) > 1 else ""
        ops = [x.strip() for x in re.split(r",(?![^\[]*\])", rest)] if rest else []
        if ops:
            last = ops[-1].split()
            s.mods = " ".join(last[1:]); ops[-1] = last[0]
        else: s.mods = ""
        op = s.op
        s.mfma = op.startswith("v_mfma")
        s.valu = op.startswith("v_") and not s.mfma
        s.dot = op.startswith("v_dot")
        s.trans = op.startswith(TRANS)
        s.dpp = "_dpp" in op or "quad_perm" in s.mods or "row_" in s.mods
        s.perm = op.startswith("v_permlane")
        s.rdl = op.startswith(("v_readlane", "v_readfirstlane"))
        s.wrl = op.startswith("v_writelane")
        s.vmem = op.startswith(("buffer_", "global_"))
        s.ds = op.startswith("ds_")
        s.store = (s.vmem and ("store" in op or "atomic" in op)) or op.startswith(("ds_write", "ds_add"))
        s.w = set(); s.r = set(); s.c = set()
        R = [regs(x) for x in ops]
        if s.label or s.dir: return
        if s.store or op.startswith(("s_cmp", "s_cbranch", "s_branch", "s_waitcnt", "s_nop", "s_barrier", "s_endpgm", "s_setprio", "s_sleep")):
            for x in R: s.r |= x
        else:
            if R: s.w |= R[0]
            for x in R[1:]: s.r |= x
            if s.perm: s.w |= R[1]; s.r |= R[0]
            if op.startswith(("v_fmac", "v_dot2c")) or s.wrl or (s.dpp and ("bank_mask:0xf" not in s.mods or "row_mask:0xf" not in s.mods)): s.r |= R[0]
            if op.startswith(("v_add_co", "v_addc_co", "v_sub_co")): s.w |= R[1]
            if s.mfma: s.c = R[3]
            if op.startswith("v_dot2_"): s.c = R[3]
            if op.startswith("v_dot2c"): s.c = R[0]
            if op.startswith("v_cmpx"): s.w.add(("s", "exec"))
        s.wide_store_data = set()
        if s.vmem and s.store and ("x4" in op or "x3" in op):
            s.wide_store_data = R[0] if op.startswith("buffer_") else R[1]
    def states(s):
        if s.label or s.dir: return 0
        if s.op == "s_nop": return int(s.line.split(";")[0].split()[1]) + 1
        return 1
def isv(x): return x[0] in "va"
def need(p, c):
    n = 0
    pw_v = {x for x in p.w if isv(x)}; pw_s = {x for x in p.w if not isv(x)}
    if p.valu:
        if c.dpp and pw_v & c.r: n = max(n, 2)
        if c.perm and pw_v & c.r: n = max(n, 2)
        if c.mfma and pw_v & c.r: n = max(n, 2)
        if c.rdl and pw_v & c.r: n = max(n, 1)
        if p.trans and c.valu and pw_v & c.r: n = max(n, 1)
        if p.dot and (c.valu or c.mfma or c.vmem or c.ds) and pw_v & (c.r | c.w):
            if not (c.op == p.op and pw_v <= c.c and not (pw_v & (c.r - c.c))): n = max(n, 3)
        if c.vmem and pw_s & c.r: n = max(n, 5)
        if c.valu and pw_s & c.r: n = max(n, 4 if (c.rdl or c.wrl) else 2)
        if not (c.valu or c.vmem) and pw_s & c.r: n = max(n, 1)
        if ("s", "exec") in pw_s:
            if c.dpp: n = max(n, 5)
            if c.perm or c.rdl or c.wrl or c.mfma: n = max(n, 4)
    if p.mfma:
        if c.mfma:
            if pw_v & (c.r - c.c): n = max(n, 8)
            if pw_v & c.c and pw_v != c.c: n = max(n, 6)
        elif (c.valu or c.vmem or c.ds) and pw_v & (c.r | c.w): n = max(n, 8)
        if c.valu and p.c & c.w: n = max(n, 3)
    if getattr(p, "wide_store_data", None) and p.wide_store_data & c.w: n = max(n, 2)
    return n
def pad(text):
    out = []
    for line in text.split("\n"):
        c = I(line)
        if not (c.label or c.dir):
            dist = 0; req = 0
            for p in reversed(out):
                if dist >= 10: break
                if not (p.label or p.dir):
                    req = max(req, need(p, c) - dist)
                dist += p.states()
            if req > 0: out.append(I(f"s_nop {req-1}"))
        out.append(c)
    return "\n".join(i.line for i in out)
```

```python
import sys
from asmlib import pad
KN = "parallel_sum__sliding_block_cached__glu_gated_glu__decode_kernel"
FULL = "row_mask:0xf bank_mask:0xf"
def q(r, n=4): return f"v[{r}:{r+n-1}]"

def gen(stamps=False, D=6, D0=2, NV1=8, nt=" nt", rot=True, flagwait=4, prefetch=0, spin=100000):
    o = []
    def a(s):
        for l in s.split("\n"): o.append("    " + l.strip() if not l.strip().endswith(":") else l.strip())
    nst = [0]
    def stamp(k):
        if stamps: a(f"s_memrealtime s[{64+2*k}:{65+2*k}]")
    def allred(op, v, t):
        for m in ("quad_perm:[1,0,3,2]", "quad_perm:[2,3,0,1]", "row_half_mirror", "row_mirror"):
            a(f"{op}_dpp v{v}, v{v}, v{v} {m} {FULL}")
        for p in ("16", "32"):
            a(f"v_mov_b32 v{t}, v{v}\nv_permlane{p}_swap_b32 v{t}, v{v}\n{op} v{v}, v{v}, v{t}")
    def redscat(r):
        a(f"v_permlane32_swap_b32 v{r}, v{r+2}\nv_permlane32_swap_b32 v{r+1}, v{r+3}")
        a(f"v_add_f32 v{r}, v{r}, v{r+2}\nv_add_f32 v{r+1}, v{r+1}, v{r+3}")
        a(f"v_permlane16_swap_b32 v{r}, v{r+1}\nv_add_f32 v{r}, v{r}, v{r+1}")
    def rbf(d, s):
        a(f"v_cvt_pk_bf16_f32 v{d}, v{s}, v{s}\nv_and_b32 v{d}, 0xffff0000, v{d}")
    sH, sS, sW, sCnt, sT0, sT1, sT2 = 40, 41, 3, 42, 43, 44, 45
    sG = 46
    sM3 = 48
    sRS = 50
    LQ, LH, LMX, LL, LO, LY = 0, 256, 512, 528, 1024, 3072
    M = 4
    hdr = open("cdna_kernels/" + KN[:-7] + ".s.ref").read().split("; Override")[0]
    o.append(hdr.rstrip())
    o.append("; @launch grid=(256,1,1) block=(512,1,1) lds=8192")
    o.append('.amdgcn_target "amdgcn-amd-amdhsa--gfx950"\n.text')
    o.append(f".globl {KN}\n.p2align 8\n.type {KN},@function\n{KN}:")
    if stamps:
        for k in range(1, 15): a(f"s_mov_b32 s{64+2*k}, 0")
    stamp(0)
    a(f"""s_load_dwordx16 s[4:19], s[0:1], 0
s_load_dwordx8 s[20:27], s[0:1], 64
s_cmp_ge_u32 s2, 256
s_cbranch_scc1 L_end
v_lshrrev_b32 v1, 6, v0
v_and_b32 v0, 63, v0
s_and_b32 s{sH}, s2, 31
v_readfirstlane_b32 s{sW}, v1
s_lshr_b32 s{sS}, s2, 5
s_mov_b32 s31, 0x20000
s_mov_b32 s35, 0x20000
s_mov_b32 s{sCnt}, {spin}
s_cmp_ge_u32 s{sW}, 4
s_cbranch_scc1 L_main""")
    def masks():
        a(f"""v_and_b32 v2, 1, v0
v_lshlrev_b32 v2, 4, v2
v_mov_b32 v3, 0xffff
v_lshlrev_b32 v2, v2, v3
v_bfe_u32 v3, v0, 1, 2""")
        for t in range(4):
            a(f"v_cmp_eq_u32 vcc, {t}, v3\nv_cndmask_b32 v{M+t}, 0, v2, vcc")
    def groupptr():
        a(f"""s_lshl_b32 s{sT0}, s{sH}, 14
s_add_u32 s{sG}, s26, s{sT0}
s_addc_u32 s{sG+1}, s27, 0
s_add_u32 s{sM3}, s26, 0x80000
s_addc_u32 s{sM3+1}, s27, 0""")
    XA, XB, W, A, T, DD = 8, 14, 20, 68, 108, 124
    a(f"""s_cmp_lt_u32 s{sW}, 2
s_movk_i32 s{sRS}, 3456
s_cselect_b32 s{sRS}, 8192, s{sRS}
v_lshrrev_b32 v1, 3, v0
v_mul_u32_u24 v1, 10, v1
s_mul_i32 s{sT0}, s{sS}, 80
v_add_u32 v1, s{sT0}, v1
v_mul_u32_u24 v2, 20, v0
v_lshlrev_b32 v3, 1, v1
v_mul_u32_u24 v1, s{sRS}, v1
v_and_b32 v19, 7, v0
v_lshl_add_u32 v1, v19, 4, v1
s_lshl_b32 s{sT0}, s{sH}, 8
s_lshl_b32 s{sT1}, s{sW}, 7
s_add_u32 s{sT0}, s{sT0}, s{sT1}
s_lshl_b32 s{sT1}, s{sH}, 7
s_sub_u32 s30, 2211840, s{sT1}
s_cmp_lt_u32 s{sH}, 27
s_cselect_b32 s30, s30, 0
s_sub_u32 s{sT2}, 5242880, s{sT0}
s_cmp_lt_u32 s{sW}, 2
s_cselect_b32 s30, s{sT2}, s30
s_cselect_b32 s{sT0}, s{sT0}, s{sT1}
s_waitcnt lgkmcnt(0)
global_load_dwordx4 {q(XA)}, v2, s[4:5]
global_load_dword v{XA+4}, v2, s[4:5] offset:16
global_load_dwordx4 {q(XB)}, v3, s[4:5]
global_load_dword v{XB+4}, v3, s[4:5] offset:16
s_cselect_b32 s28, s10, s16
s_cselect_b32 s29, s11, s17
s_cmp_eq_u32 s{sW}, 3
s_cselect_b32 s28, s18, s28
s_cselect_b32 s29, s19, s29
s_add_u32 s28, s28, s{sT0}
s_addc_u32 s29, s29, 0
s_mov_b32 s{sT1}, 0""")
    for i in range(10):
        a(f"buffer_load_dwordx4 {q(W+4*i)}, v1, s[28:31], s{sT1} offen{nt}")
        if i < 9: a(f"s_add_u32 s{sT1}, s{sT1}, s{sRS}")
    npf = 0
    if prefetch:
        a(f"""s_getpc_b64 s[52:53]
s_and_b32 s52, s52, 0xffffff00
v_lshlrev_b32 v2, 7, v0
v_min_u32 v2, {prefetch}, v2
global_load_dword v13, v2, s[52:53]""")
        npf = 1
    stamp(1)
    masks(); groupptr()
    a(f"s_waitcnt vmcnt({12+npf})")
    stamp(2)
    for i in range(5):
        a(f"v_lshlrev_b32 v{T+2*i}, 16, v{XA+i}\nv_and_b32 v{T+2*i+1}, 0xffff0000, v{XA+i}")
    a(f"v_add_f32 v2, v{T}, v{T+1}\nv_add_f32 v3, v{T+2}, v{T+3}")
    for i in range(2, 5):
        a(f"v_add_f32 v2, v2, v{T+2*i}\nv_add_f32 v3, v3, v{T+2*i+1}")
    a("v_add_f32 v2, v2, v3")
    allred("v_add_f32", 2, 3)
    a("v_mul_f32 v2, 0x3acccccd, v2")
    for i in range(10): a(f"v_sub_f32 v{T+i}, v{T+i}, v2")
    a(f"v_mul_f32 v3, v{T}, v{T}\nv_mul_f32 v19, v{T+1}, v{T+1}")
    for i in range(1, 5):
        a(f"v_fmac_f32 v3, v{T+2*i}, v{T+2*i}\nv_fmac_f32 v19, v{T+2*i+1}, v{T+2*i+1}")
    a("v_add_f32 v3, v3, v19")
    allred("v_add_f32", 3, 19)
    a("v_mul_f32 v3, 0x3acccccd, v3")
    rbf(2, 2); rbf(3, 3)
    a("v_add_f32 v3, 0x3727c5ac, v3")
    rbf(3, 3)
    a("v_sqrt_f32 v3, v3")
    rbf(3, 3)
    a(f"v_rcp_f32 v3, v3\ns_waitcnt vmcnt({10+npf})")
    for i in range(5):
        a(f"v_lshlrev_b32 v{T+2*i}, 16, v{XB+i}\nv_and_b32 v{T+2*i+1}, 0xffff0000, v{XB+i}")
    for i in range(10): a(f"v_sub_f32 v{T+i}, v{T+i}, v2")
    for i in range(5): a(f"v_cvt_pk_bf16_f32 v{XB+i}, v{T+2*i}, v{T+2*i+1}")
    for i in range(5):
        a(f"v_lshlrev_b32 v{T+2*i}, 16, v{XB+i}\nv_and_b32 v{T+2*i+1}, 0xffff0000, v{XB+i}")
    for i in range(10): a(f"v_mul_f32 v{T+i}, v{T+i}, v3")
    for i in range(10): a(f"v_cvt_pk_bf16_f32 v{T+i}, v{T+i}, v{T+i}")
    for i in range(10):
        for t in range(4): a(f"v_and_b32 v{A+4*i+t}, v{T+i}, v{M+t}")
    stamp(3)
    a(f"s_lshl_b32 s{sT0}, s{sH}, 2\nv_mov_b32 v8, s{sT0}")
    extra = 0
    for i in range(10):
        a(f"s_waitcnt vmcnt({9-i+npf+extra})")
        if 10 - i == flagwait:
            a("global_load_dword v9, v8, s[24:25] sc1"); extra = 1
        a(f"v_mfma_f32_16x16x32_bf16 {q(DD)}, {q(A+4*i)}, {q(W+4*i)}, {'0' if i == 0 else q(DD)}")
    if not extra: a("global_load_dword v9, v8, s[24:25] sc1")
    stamp(4)
    a(f"""v_and_b32 v1, 7, v0
v_lshlrev_b32 v1, 5, v1
v_and_b32 v2, 16, v0
v_add_u32 v1, v1, v2
v_lshrrev_b32 v2, 5, v0
v_lshl_add_u32 v1, v2, 3, v1
s_lshl_b32 s{sT0}, s{sS}, 10
s_lshl_b32 s{sT1}, s{sW}, 8
s_add_u32 s{sT0}, s{sT0}, s{sT1}
v_add_u32 v1, s{sT0}, v1""")
    a(f"""v_permlane32_swap_b32 v{DD}, v{DD+2}
v_permlane32_swap_b32 v{DD+1}, v{DD+3}
v_add_f32_dpp v{DD}, v{DD+2}, v{DD} row_ror:8 {FULL}
v_add_f32_dpp v{DD+1}, v{DD+3}, v{DD+1} row_ror:8 {FULL}""")
    a(f"""v_and_b32 v2, 15, v0
v_lshlrev_b32 v2, 4, v2
v_and_b32 v3, 8, v0
v_lshl_add_u32 v3, v3, 4, v2
s_lshl_b32 s{sT0}, s{sW}, 7
s_add_u32 s{sT0}, s{sT0}, 256
s_cmp_lt_u32 s{sW}, 2
s_cselect_b64 vcc, -1, 0
s_cselect_b32 s{sT0}, s{sT1}, s{sT0}
v_cndmask_b32 v2, v3, v2, vcc
v_lshrrev_b32 v3, 4, v0
v_lshl_add_u32 v2, v3, 10, v2
v_add_u32 v2, s{sT0}, v2
v_add_u32 v10, 0x1000, v2
v_and_b32 v11, 31, v0
v_lshlrev_b32 v11, 2, v11
s_mov_b32 s54, 0x00ff00ff
s_mov_b32 s55, 0x00ff00ff
L_flag:
s_waitcnt vmcnt(0)
v_cmp_ne_u32 vcc, 0, v9
s_cbranch_vccnz L_flag_ok
global_load_dword v9, v8, s[24:25] sc1
s_sub_i32 s{sCnt}, s{sCnt}, 1
s_cmp_gt_i32 s{sCnt}, 0
s_cbranch_scc1 L_flag
L_flag_ok:
s_mov_b64 exec, s[54:55]
global_store_dwordx2 v1, v[{DD}:{DD+1}], s[{sG}:{sG+1}] sc1
s_mov_b64 exec, -1""")
    stamp(5)
    a(f"""L_g1:
global_load_dwordx4 {q(W)}, v2, s[{sG}:{sG+1}] sc1
global_load_dwordx4 {q(W+4)}, v10, s[{sG}:{sG+1}] sc1
global_load_dword v9, v11, s[24:25] sc1
s_waitcnt vmcnt(0)
v_max3_u32 v3, v{W}, v{W+1}, v{W+2}
v_max3_u32 v3, v3, v{W+3}, v{W+4}
v_max3_u32 v3, v3, v{W+5}, v{W+6}
v_add_u32 v9, -1, v9
v_max3_u32 v3, v3, v{W+7}, v9
v_cmp_eq_u32 vcc, -1, v3
s_cbranch_vccz L_g1_ok
s_sub_i32 s{sCnt}, s{sCnt}, 1
s_cmp_gt_i32 s{sCnt}, 0
s_cbranch_scc1 L_g1
L_g1_ok:""")
    stamp(6)
    for r in range(4): a(f"v_add_f32 v{W+r}, v{W+r}, v{W+4+r}")
    redscat(W)
    a(f"""v_cvt_pk_bf16_f32 v{W}, v{W}, v{W}
v_and_b32 v2, 15, v0
v_lshrrev_b32 v3, 4, v0
v_lshl_add_u32 v2, v2, 2, v3
s_cmp_lt_u32 s{sW}, 2
s_cbranch_scc0 L_glu
s_lshl_b32 s{sT0}, s{sW}, 6
v_add_lshl_u32 v2, v2, s{sT0}, 1
ds_write_b16 v2, v{W} offset:{LQ}
s_branch L_b1
L_glu:
v_and_b32 v{W}, 0xffff0000, v{W}
v_mul_f32 v3, 0xbfb8aa3b, v{W}
v_exp_f32 v3, v3
s_lshl_b32 s{sT0}, s{sW}, 5
v_add_f32 v3, 1.0, v3
v_rcp_f32 v3, v3
s_sub_u32 s{sT0}, s{sT0}, 64""")
    rbf(3, 3)
    a(f"""v_mul_f32_dpp v3, v{W}, v3 row_ror:8 {FULL}
v_add_lshl_u32 v2, v2, s{sT0}, 2
v_cvt_pk_bf16_f32 v3, v3, v3
s_mov_b64 exec, s[54:55]
ds_write_b32 v2, v3 offset:{LH}
s_mov_b64 exec, -1
L_b1:
s_waitcnt lgkmcnt(0)
s_barrier""")
    stamp(7)
    WD, WO, AF, ML = 20, 36, 100, 116
    a(f"""v_lshrrev_b32 v3, 4, v0
s_lshl_b32 s{sT0}, s{sW}, 6
v_lshl_add_u32 v2, v3, 4, s{sT0}
ds_read_b128 v[8:11], v2 offset:{LH}
s_mul_i32 s{sT0}, s{sH}, {128*1280}
s_mul_i32 s{sT1}, s{sS}, 160
s_add_u32 s{sT0}, s{sT0}, s{sT1}
s_add_u32 s28, s12, s{sT0}
s_addc_u32 s29, s13, 0
s_sub_u32 s30, 5242880, s{sT0}
s_mul_i32 s{sT0}, s{sH}, {64*1280}
s_add_u32 s{sT0}, s{sT0}, s{sT1}
s_add_u32 s32, s20, s{sT0}
s_addc_u32 s33, s21, 0
s_sub_u32 s34, 2211840, s{sT0}
s_cmp_lt_u32 s{sH}, 27
s_cselect_b32 s34, s34, 0
v_and_b32 v2, 15, v0
v_cmp_gt_u32 vcc, 10, v2
v_lshlrev_b32 v2, 4, v2
v_mov_b32 v12, 0x40000000
v_cndmask_b32 v2, v12, v2, vcc
s_mul_i32 s{sT0}, s{sW}, {32*1280}
s_movk_i32 s{sT1}, 1280
v_mad_u32_u24 v12, v3, s{sT1}, v2
v_add_u32 v12, s{sT0}, v12
s_movk_i32 s{sT1}, 5120
v_mad_u32_u24 v13, v3, s{sT1}, v2
s_mul_i32 s{sT0}, s{sW}, {16*1280}
v_add_u32 v13, s{sT0}, v13""")
    for t in range(4): a(f"v_cndmask_b32 v{ML+t}, 0, v{M+t}, s[54:55]")
    for t in range(4): a(f"v_cndmask_b32 v{M+t}, v{M+t}, 0, s[54:55]")
    a(f"""s_lshl_b32 s{sT0}, s{sW}, 10
s_add_u32 s{sT0}, s{sT0}, 8192
v_lshl_add_u32 v14, v0, 4, s{sT0}
v_and_b32 v15, 56, v0
v_add_u32 v15, 12288, v15
s_waitcnt lgkmcnt(0)""")
    for i in range(4):
        for t in range(4): a(f"v_and_b32 v{AF+4*i+t}, v{8+i}, v{M+t}")
    a("s_barrier")
    stamp(8)
    for i in range(4):
        a(f"buffer_load_dwordx4 {q(WD+4*i)}, v13, s[32:35], 0 offen offset:{1280*i}{nt}")
    a(f"s_mov_b32 s{sT0}, 0")
    for i in range(8):
        a(f"buffer_load_dwordx4 {q(WO+4*i)}, v12, s[28:31], s{sT0} offen{nt}")
        if i < 7: a(f"s_add_u32 s{sT0}, s{sT0}, 5120")
    stamp(9)
    a(f"""s_lshl_b32 s{sT0}, s{sW}, 10
v_lshlrev_b32 v16, 4, v0
v_add_u32 v17, s{sT0}, v16
v_and_b32 v1, 15, v0
v_lshrrev_b32 v2, 1, v1
v_lshlrev_b32 v2, 12, v2
v_and_b32 v3, 1, v1
v_lshl_add_u32 v2, v3, 5, v2
v_and_b32 v3, 16, v0
v_add_u32 v2, v2, v3
v_and_b32 v3, 32, v0
v_lshl_add_u32 v2, v3, 1, v2
s_mul_i32 s{sT0}, s{sS}, 20480
s_lshl_b32 s{sT1}, s{sH}, 7
s_add_u32 s{sT0}, s{sT0}, s{sT1}
v_add_u32 v18, s{sT0}, v2
s_mov_b32 s56, 0x03ff03ff
s_mov_b32 s57, 0x03ff03ff
s_barrier""")
    stamp(10)
    for i in range(4):
        a(f"s_waitcnt vmcnt({11-i})\nv_mfma_f32_16x16x32_bf16 {q(DD)}, {q(AF+4*i)}, {q(WD+4*i)}, {'0' if i == 0 else q(DD)}")
    a(f"""L_g2:
global_load_dwordx2 v[2:3], v15, s[{sG}:{sG+1}] sc1
global_load_dwordx4 v[8:11], v14, s[{sG}:{sG+1}] sc1
s_waitcnt vmcnt(0)
v_max3_u32 v1, v8, v9, v10
v_max3_u32 v19, v11, v2, v3
v_max_u32 v1, v1, v19
v_cmp_eq_u32 vcc, -1, v1
s_cbranch_vccz L_g2_ok
s_sub_i32 s{sCnt}, s{sCnt}, 1
s_cmp_gt_i32 s{sCnt}, 0
s_cbranch_scc1 L_g2
L_g2_ok:""")
    stamp(11)
    def red8(op, v, t):
        a(f"{op}_dpp v{v}, v{v}, v{v} row_ror:8 {FULL}")
        for p in ("16", "32"):
            a(f"v_mov_b32 v{t}, v{v}\nv_permlane{p}_swap_b32 v{t}, v{v}\n{op} v{v}, v{v}, v{t}")
    a("v_mov_b32 v1, v2")
    red8("v_max_f32", 1, 19)
    a("v_sub_f32 v2, v2, v1\nv_mul_f32 v2, 0x3fb8aa3b, v2\nv_exp_f32 v2, v2")
    a("v_mul_f32 v3, v3, v2")
    for r in range(4): a(f"v_mul_f32 v{8+r}, v{8+r}, v2")
    red8("v_add_f32", 3, 19)
    redscat(8)
    a(f"v_rcp_f32 v3, v3\nv_add_f32_dpp v8, v8, v8 row_ror:8 {FULL}\nv_mul_f32 v8, v8, v3\nv_cvt_pk_bf16_f32 v8, v8, v8")
    for i in range(8):
        for t in range(4): a(f"v_and_b32_dpp v{A+4*i+t}, v8, v{ML+t} row_newbcast:{i} {FULL}")
        if i: a(f"v_mfma_f32_16x16x32_bf16 {q(DD)}, {q(A+4*i-4)}, {q(WO+4*i-4)}, {q(DD)}")
    a(f"v_mfma_f32_16x16x32_bf16 {q(DD)}, {q(A+28)}, {q(WO+28)}, {q(DD)}")
    a(f"ds_write_b128 v17, {q(DD)} offset:{LY}\ns_waitcnt lgkmcnt(0)\ns_barrier")
    stamp(12)
    a(f"""s_cmp_eq_u32 s{sW}, 0
s_cbranch_scc0 L_notpub""")
    for k in range(4): a(f"ds_read_b128 {q(20+4*k)}, v16 offset:{LY+1024*k}")
    a("s_waitcnt lgkmcnt(2)")
    for r in range(4): a(f"v_add_f32 v{20+r}, v{20+r}, v{24+r}")
    a("s_waitcnt lgkmcnt(0)")
    for r in range(4): a(f"v_add_f32 v{28+r}, v{28+r}, v{32+r}")
    for r in range(4): a(f"v_add_f32 v{20+r}, v{20+r}, v{28+r}")
    a(f"""s_mov_b64 exec, s[56:57]
global_store_dwordx4 v18, v[20:23], s[{sM3}:{sM3+1}] sc1
s_mov_b64 exec, -1
s_branch L_done
L_notpub:
s_cmp_eq_u32 s{sW}, 1
s_cbranch_scc0 L_done
s_cmp_ge_u32 s{sH}, 27
s_cbranch_scc0 L_done
s_sub_u32 s{sT0}, s{sH}, 27
s_lshl_b32 s{sT0}, s{sT0}, 3
s_add_u32 s{sT0}, s{sT0}, s{sS}
s_lshl_b32 s{sT1}, s{sT0}, 12
v_add_u32 v16, s{sT1}, v16
v_and_b32 v1, 3, v0
v_lshrrev_b32 v2, 4, v0
v_lshl_add_u32 v1, v1, 2, v2
s_lshl_b32 s{sT0}, s{sT0}, 4
v_add_lshl_u32 v1, v1, s{sT0}, 1
global_load_ushort v2, v1, s[4:5]
L_g3:""")
    for k in range(4): a(f"global_load_dwordx4 {q(20+4*k)}, v16, s[{sM3}:{sM3+1}] offset:{1024*k} sc1")
    a("s_waitcnt vmcnt(2)\nv_max3_u32 v3, v20, v21, v22\nv_max3_u32 v3, v3, v23, v24\nv_max3_u32 v3, v3, v25, v26")
    a("s_waitcnt vmcnt(0)\nv_max3_u32 v19, v27, v28, v29\nv_max3_u32 v3, v3, v30, v31\nv_max3_u32 v19, v19, v32, v33\nv_max3_u32 v3, v3, v34, v35\nv_max_u32 v3, v3, v19")
    a(f"""v_cmp_eq_u32 vcc, -1, v3
s_cbranch_vccz L_g3_ok
s_sub_i32 s{sCnt}, s{sCnt}, 1
s_cmp_gt_i32 s{sCnt}, 0
s_cbranch_scc1 L_g3
L_g3_ok:""")
    stamp(13)
    for r in range(4): a(f"v_add_f32 v{20+r}, v{20+r}, v{24+r}")
    for r in range(4): a(f"v_add_f32 v{28+r}, v{28+r}, v{32+r}")
    for r in range(4): a(f"v_add_f32 v{20+r}, v{20+r}, v{28+r}")
    redscat(20)
    a(f"v_lshlrev_b32 v2, 16, v2\nv_add_f32_dpp v20, v20, v20 row_ror:8 {FULL}")
    rbf(20, 20)
    a("v_add_f32 v2, v2, v20")
    rbf(2, 2)
    a(f"""v_add_f32_dpp v2, v20, v2 row_shl:4 {FULL}
s_mov_b32 s56, 0x000f000f
s_mov_b32 s57, 0x000f000f
v_cvt_pk_bf16_f32 v2, v2, v2
s_mov_b64 exec, s[56:57]
global_store_short v1, v2, s[22:23]
s_mov_b64 exec, -1
s_branch L_done""")
    KR, VR, S, Q = 16, 80, 144, 8
    a("L_main:")
    a(f"""s_sub_u32 s{sW}, s{sW}, 4
s_lshl_b32 s{sT0}, s{sW}, 12
v_lshl_add_u32 v1, v0, 4, s{sT0}
s_lshl_b32 s{sT0}, s{sH}, 21
s_lshl_b32 s{sT1}, s{sS}, 16
s_add_u32 s{sT0}, s{sT0}, s{sT1}
s_add_u32 s{sT0}, s{sT0}, 0x180000
s_mov_b32 s30, 0x10000
s_mov_b32 s34, 0x10000""")
    if rot:
        a(f"s_lshr_b32 s{sT1}, s2, 3\ns_add_u32 s{sT1}, s{sT1}, s2\ns_lshl_b32 s{sT1}, s{sT1}, 14")
    else:
        a(f"s_mov_b32 s{sT1}, 0")
    for t in range(4):
        a(f"s_and_b32 s{36+t}, s{sT1}, 0xc000")
        if t < 3: a(f"s_add_u32 s{sT1}, s{sT1}, 0x4000")
    a(f"""s_or_b32 s{sT2}, s{sS}, s{sW}
s_waitcnt lgkmcnt(0)
s_add_u32 s28, s6, s{sT0}
s_addc_u32 s29, s7, 0
s_add_u32 s32, s8, s{sT0}
s_addc_u32 s33, s9, 0""")
    groupptr()
    a(f"""s_cmp_eq_u32 s{sT2}, 0
s_cbranch_scc0 L_noclear
v_mov_b32 v8, -1
v_mov_b32 v9, -1
v_mov_b32 v10, -1
v_mov_b32 v11, -1
v_add_u32 v2, 0x1000, v1
v_add_u32 v3, 0x3000, v1
s_mul_i32 s{sT0}, s{sH}, 5120
s_add_u32 s{sT0}, s{sT0}, 1024
v_add_u32 v12, s{sT0}, v1""")
    for k in range(8): a(f"global_store_dwordx4 v2, v[8:11], s[{sG}:{sG+1}] offset:{1024*k-4096} sc1")
    for k in range(5): a(f"global_store_dwordx4 v3, v[8:11], s[{sG}:{sG+1}] offset:{1024*k-4096} sc1")
    for k in range(5): a(f"global_store_dwordx4 v12, v[8:11], s[{sM3}:{sM3+1}] offset:{1024*k-1024} sc1")
    a(f"""s_lshl_b32 s{sT0}, s{sH}, 2
v_mov_b32 v2, s{sT0}
v_mov_b32 v3, 1
s_waitcnt vmcnt(0)
s_mov_b64 exec, 1
global_store_dword v2, v3, s[24:25] sc1
s_mov_b64 exec, -1
L_noclear:""")
    stamp(1)
    def ld(n):
        i = n & 15
        base, srd = (KR, "s[28:31]") if n < 16 else (VR, "s[32:35]")
        a(f"buffer_load_dwordx4 {q(base+4*i)}, v1, {srd}, s{36+(i>>2)} offen offset:{1024*(i&3)}{nt}")
    for n in range(D0): ld(n)
    masks()
    a(f"v_and_b32 v2, 15, v0\nv_lshlrev_b32 v12, 4, v2")
    a("s_mov_b32 s54, 0xcccccccc\ns_mov_b32 s55, 0xcccccccc\ns_mov_b32 s56, 0xaaaaaaaa\ns_mov_b32 s57, 0xaaaaaaaa")
    if D0 < D: a(f"s_waitcnt vmcnt({D0-1})")
    for n in range(D0, 16 + NV1):
        if n >= D: a(f"s_waitcnt vmcnt({D-1})")
        ld(n)
        if n == 15: stamp(2)
    stamp(3)
    a("s_barrier")
    stamp(4)
    a(f"ds_read_b128 {q(Q)}, v12 offset:{LQ}")
    a(f"s_waitcnt vmcnt({min(NV1, 63)}) lgkmcnt(0)")
    nxt = 16 + NV1
    for i0 in range(0, 16, 4):
        for r in range(4):
            for i in range(i0, i0 + 4):
                a(f"v_dot2_f32_bf16 v{S+i}, v{KR+4*i+r}, v{Q+r}, {'0' if r == 0 else 'v%d' % (S+i)}")
            if r == 3 or r == 1:
                if nxt < 32: ld(nxt); nxt += 1
    for i in range(8):
        a(f"v_add_f32_dpp v{S+i}, v{S+i}, v{S+i} row_ror:8 row_mask:0xf bank_mask:0x3")
    for i in range(8):
        a(f"v_add_f32_dpp v{S+i}, v{S+i+8}, v{S+i+8} row_ror:8 row_mask:0xf bank_mask:0xc")
    for i in range(4):
        a(f"v_add_f32_dpp v{S+i}, v{S+i}, v{S+i} row_shl:4 row_mask:0xf bank_mask:0x5")
    for i in range(4):
        a(f"v_add_f32_dpp v{S+i}, v{S+i+4}, v{S+i+4} row_shr:4 row_mask:0xf bank_mask:0xa")
    while nxt < 32: ld(nxt); nxt += 1
    for i in range(4):
        a(f"v_add_f32_dpp v{S+i}, v{S+i}, v{S+i} quad_perm:[2,3,0,1] {FULL}")
    a(f"v_cndmask_b32 v{S}, v{S}, v{S+2}, s[54:55]\nv_cndmask_b32 v{S+1}, v{S+1}, v{S+3}, s[54:55]")
    for i in range(2):
        a(f"v_add_f32_dpp v{S+i}, v{S+i}, v{S+i} quad_perm:[1,0,3,2] {FULL}")
    a(f"v_cndmask_b32 v{S}, v{S}, v{S+1}, s[56:57]")
    rbf(S, S)
    a(f"v_mul_f32 v{S}, 0x3db504f3, v{S}")
    rbf(S, S)
    a(f"v_mov_b32 v2, v{S}")
    allred("v_max_f32", 2, 3)
    a(f"""s_lshl_b32 s{sT0}, s{sW}, 2
v_mov_b32 v13, s{sT0}
v_mov_b32 v14, 0
ds_write_b32 v13, v2 offset:{LMX}
s_waitcnt lgkmcnt(0)""")
    stamp(5)
    a(f"""s_barrier
ds_read_b128 v[8:11], v14 offset:{LMX}
v_and_b32 v3, 15, v0
v_lshlrev_b32 v3, 5, v3
v_and_b32 v12, 16, v0
v_add_u32 v12, v3, v12
s_lshl_b32 s{sT0}, s{sW}, 9
v_add_u32 v15, s{sT0}, v12
s_waitcnt lgkmcnt(0)
v_max3_f32 v2, v8, v9, v10
v_max_f32 v2, v2, v11
v_sub_f32 v{S}, v{S}, v2
v_mul_f32 v{S}, 0x3fb8aa3b, v{S}
v_exp_f32 v3, v{S}
v_cvt_pk_bf16_f32 v{S}, v3, v3""")
    allred("v_add_f32", 3, S+1)
    a(f"ds_write_b32 v13, v3 offset:{LL}")
    for i in range(16):
        for t in range(4): a(f"v_and_b32_dpp v{KR+4*i+t}, v{S}, v{M+t} row_newbcast:{i} {FULL}")
    stamp(6)
    for i in range(16):
        a(f"s_waitcnt vmcnt({15-i})\nv_mfma_f32_16x16x32_bf16 {q(S+4)}, {q(KR+4*i)}, {q(VR+4*i)}, {'0' if i == 0 else q(S+4)}")
    stamp(7)
    a(f"""s_mov_b32 exec_hi, 0
ds_write_b128 v15, {q(S+4)} offset:{LO}
s_waitcnt lgkmcnt(0)
s_barrier""")
    stamp(8)
    a(f"""s_cmp_eq_u32 s{sW}, 0
s_cbranch_scc0 L_mdone
v_lshlrev_b32 v12, 4, v0""")
    for k in range(4): a(f"ds_read_b128 {q(16+4*k)}, v12 offset:{LO+512*k}")
    a(f"""ds_read_b128 v[8:11], v14 offset:{LL}
v_lshrrev_b32 v13, 3, v0
v_lshlrev_b32 v13, 10, v13
v_and_b32 v12, 0x70, v12
v_add_u32 v13, v13, v12
s_lshl_b32 s{sT0}, s{sS}, 7
s_add_u32 s{sT0}, s{sT0}, 8192
v_add_u32 v13, s{sT0}, v13
s_lshl_b32 s{sT0}, s{sS}, 3
s_add_u32 s{sT0}, s{sT0}, 12288
v_mov_b32 v14, s{sT0}
s_waitcnt lgkmcnt(3)""")
    for r in range(4): a(f"v_add_f32 v{16+r}, v{16+r}, v{20+r}")
    a("s_waitcnt lgkmcnt(1)")
    for r in range(4): a(f"v_add_f32 v{24+r}, v{24+r}, v{28+r}")
    for r in range(4): a(f"v_add_f32 v{16+r}, v{16+r}, v{24+r}")
    a(f"""global_store_dwordx4 v13, v[16:19], s[{sG}:{sG+1}] sc1
s_waitcnt lgkmcnt(0)
v_add_f32 v8, v8, v9
v_add_f32 v10, v10, v11
v_add_f32 v3, v8, v10
s_mov_b64 exec, 1
global_store_dwordx2 v14, v[2:3], s[{sG}:{sG+1}] sc1""")
    stamp(9)
    a(f"L_mdone:\ns_mov_b64 exec, -1")
    if stamps: a(f"s_add_u32 s{sW}, s{sW}, 4")
    a("L_done:")
    if stamps:
        a("s_waitcnt vmcnt(0)")
        stamp(14)
        a("s_waitcnt lgkmcnt(0)\nv_mov_b32 v4, 0")
        for n in range(15): a(f"v_writelane_b32 v4, s{64+2*n}, {n}")
        a(f"v_writelane_b32 v4, s{sCnt}, 15")
        a(f"""s_lshl_b32 s{sT0}, s2, 3
s_add_u32 s{sT0}, s{sT0}, s{sW}
s_lshl_b32 s{sT0}, s{sT0}, 8
s_add_u32 s{sT0}, s{sT0}, 0x1000000
v_lshl_add_u32 v5, v0, 2, s{sT0}
global_store_dword v5, v4, s[26:27]""")
    a("L_end:\ns_endpgm")
    o.append(f""".section .rodata,"a"
.p2align 6
.amdhsa_kernel {KN}
  .amdhsa_next_free_vgpr 160
  .amdhsa_next_free_sgpr 102
  .amdhsa_accum_offset 160
  .amdhsa_group_segment_fixed_size 0
  .amdhsa_kernarg_size 96
  .amdhsa_user_sgpr_count 2
  .amdhsa_user_sgpr_kernarg_segment_ptr 1
  .amdhsa_system_sgpr_workgroup_id_x 1
  .amdhsa_float_denorm_mode_32 3
.end_amdhsa_kernel""")
    txt = "\n".join(o)
    if stamps:
        import re
        txt = re.sub(r"lgkmcnt\(\d+\)", "lgkmcnt(0)", txt)
    return pad(txt) + "\n"
if __name__ == "__main__":
    kw = eval("dict(" + (sys.argv[2] if len(sys.argv) > 2 else "") + ")")
    open(sys.argv[1], "w").write(gen(**kw))
ROLES = {"front": slice(0, 4), "main": slice(4, 8)}
```

```python
import sys
from asmlib import pad
KN = "parallel_sum__sliding_block_cached__glu_gated_glu__decode_kernel"
FULL = "row_mask:0xf bank_mask:0xf"
def q(r, n=4): return f"v[{r}:{r+n-1}]"

def gen(stamps=False, D=6, D0=2, NV1=8, nt=" nt", rot=True, flagwait=4, prefetch=0, spin=100000, dbgwave=None):
    o = []
    def a(s):
        for l in s.split("\n"): o.append("    " + l.strip() if not l.strip().endswith(":") else l.strip())
    nst = [0]
    def stamp(k):
        if stamps: a(f"s_memrealtime s[{64+2*k}:{65+2*k}]")
    def allred(op, v, t):
        for m in ("quad_perm:[1,0,3,2]", "quad_perm:[2,3,0,1]", "row_half_mirror", "row_mirror"):
            a(f"{op}_dpp v{v}, v{v}, v{v} {m} {FULL}")
        for p in ("16", "32"):
            a(f"v_mov_b32 v{t}, v{v}\nv_permlane{p}_swap_b32 v{t}, v{v}\n{op} v{v}, v{v}, v{t}")
    def redscat(r):
        a(f"v_permlane32_swap_b32 v{r}, v{r+2}\nv_permlane32_swap_b32 v{r+1}, v{r+3}")
        a(f"v_add_f32 v{r}, v{r}, v{r+2}\nv_add_f32 v{r+1}, v{r+1}, v{r+3}")
        a(f"v_permlane16_swap_b32 v{r}, v{r+1}\nv_add_f32 v{r}, v{r}, v{r+1}")
    def rbf(d, s):
        a(f"v_cvt_pk_bf16_f32 v{d}, v{s}, v{s}\nv_and_b32 v{d}, 0xffff0000, v{d}")
    sH, sS, sW, sCnt, sT0, sT1, sT2 = 40, 41, 3, 42, 43, 44, 45
    sG = 46
    sM3 = 48
    sRS = 50
    LQ, LH, LMX, LL, LO, LY = 0, 256, 512, 528, 1024, 3072
    M = 4
    hdr = open("cdna_kernels/" + KN[:-7] + ".s.ref").read().split("; Override")[0]
    o.append(hdr.rstrip())
    o.append("; @launch grid=(256,1,1) block=(512,1,1) lds=8192")
    o.append('.amdgcn_target "amdgcn-amd-amdhsa--gfx950"\n.text')
    o.append(f".globl {KN}\n.p2align 8\n.type {KN},@function\n{KN}:")
    if stamps:
        for k in range(1, 15): a(f"s_mov_b32 s{64+2*k}, 0")
    stamp(0)
    a(f"""s_load_dwordx16 s[4:19], s[0:1], 0
s_load_dwordx8 s[20:27], s[0:1], 64
s_cmp_ge_u32 s2, 256
s_cbranch_scc1 L_end
v_lshrrev_b32 v1, 6, v0
v_and_b32 v0, 63, v0
s_and_b32 s{sH}, s2, 31
v_readfirstlane_b32 s{sW}, v1
s_lshr_b32 s{sS}, s2, 5
s_mov_b32 s31, 0x20000
s_mov_b32 s35, 0x20000
s_mov_b32 s{sCnt}, {spin}
s_cmp_ge_u32 s{sW}, 4
s_cbranch_scc1 L_main""")
    def masks():
        a(f"""v_and_b32 v2, 1, v0
v_lshlrev_b32 v2, 4, v2
v_mov_b32 v3, 0xffff
v_lshlrev_b32 v2, v2, v3
v_bfe_u32 v3, v0, 1, 2""")
        for t in range(4):
            a(f"v_cmp_eq_u32 vcc, {t}, v3\nv_cndmask_b32 v{M+t}, 0, v2, vcc")
    def groupptr():
        a(f"""s_lshl_b32 s{sT0}, s{sH}, 14
s_add_u32 s{sG}, s26, s{sT0}
s_addc_u32 s{sG+1}, s27, 0
s_add_u32 s{sM3}, s26, 0x80000
s_addc_u32 s{sM3+1}, s27, 0""")
    XA, XB, W, A, T, DD = 8, 14, 20, 68, 108, 124
    a(f"""s_cmp_lt_u32 s{sW}, 2
s_movk_i32 s{sRS}, 3456
s_cselect_b32 s{sRS}, 8192, s{sRS}
v_lshrrev_b32 v1, 3, v0
v_mul_u32_u24 v1, 10, v1
s_mul_i32 s{sT0}, s{sS}, 80
v_add_u32 v1, s{sT0}, v1
v_mul_u32_u24 v2, 20, v0
v_lshlrev_b32 v3, 1, v1
v_mul_u32_u24 v1, s{sRS}, v1
v_and_b32 v19, 7, v0
v_lshl_add_u32 v1, v19, 4, v1
s_lshl_b32 s{sT0}, s{sH}, 8
s_lshl_b32 s{sT1}, s{sW}, 7
s_add_u32 s{sT0}, s{sT0}, s{sT1}
s_lshl_b32 s{sT1}, s{sH}, 7
s_sub_u32 s30, 2211840, s{sT1}
s_cmp_lt_u32 s{sH}, 27
s_cselect_b32 s30, s30, 0
s_sub_u32 s{sT2}, 5242880, s{sT0}
s_cmp_lt_u32 s{sW}, 2
s_cselect_b32 s30, s{sT2}, s30
s_cselect_b32 s{sT0}, s{sT0}, s{sT1}
s_waitcnt lgkmcnt(0)
global_load_dwordx4 {q(XA)}, v2, s[4:5]
global_load_dword v{XA+4}, v2, s[4:5] offset:16
global_load_dwordx4 {q(XB)}, v3, s[4:5]
global_load_dword v{XB+4}, v3, s[4:5] offset:16
s_cselect_b32 s28, s10, s16
s_cselect_b32 s29, s11, s17
s_cmp_eq_u32 s{sW}, 3
s_cselect_b32 s28, s18, s28
s_cselect_b32 s29, s19, s29
s_add_u32 s28, s28, s{sT0}
s_addc_u32 s29, s29, 0
s_mov_b32 s{sT1}, 0""")
    for i in range(10):
        a(f"buffer_load_dwordx4 {q(W+4*i)}, v1, s[28:31], s{sT1} offen{nt}")
        if i < 9: a(f"s_add_u32 s{sT1}, s{sT1}, s{sRS}")
    npf = 0
    if prefetch:
        a(f"""s_getpc_b64 s[52:53]
s_and_b32 s52, s52, 0xffffff00
v_lshlrev_b32 v2, 7, v0
v_min_u32 v2, {prefetch}, v2
global_load_dword v13, v2, s[52:53]""")
        npf = 1
    stamp(1)
    masks(); groupptr()
    a(f"s_waitcnt vmcnt({12+npf})")
    stamp(2)
    for i in range(5):
        a(f"v_lshlrev_b32 v{T+2*i}, 16, v{XA+i}\nv_and_b32 v{T+2*i+1}, 0xffff0000, v{XA+i}")
    a(f"v_add_f32 v2, v{T}, v{T+1}\nv_add_f32 v3, v{T+2}, v{T+3}")
    for i in range(2, 5):
        a(f"v_add_f32 v2, v2, v{T+2*i}\nv_add_f32 v3, v3, v{T+2*i+1}")
    a("v_add_f32 v2, v2, v3")
    allred("v_add_f32", 2, 3)
    a("v_mul_f32 v2, 0x3acccccd, v2")
    for i in range(10): a(f"v_sub_f32 v{T+i}, v{T+i}, v2")
    a(f"v_mul_f32 v3, v{T}, v{T}\nv_mul_f32 v19, v{T+1}, v{T+1}")
    for i in range(1, 5):
        a(f"v_fmac_f32 v3, v{T+2*i}, v{T+2*i}\nv_fmac_f32 v19, v{T+2*i+1}, v{T+2*i+1}")
    a("v_add_f32 v3, v3, v19")
    allred("v_add_f32", 3, 19)
    a("v_mul_f32 v3, 0x3acccccd, v3")
    rbf(2, 2); rbf(3, 3)
    a("v_add_f32 v3, 0x3727c5ac, v3")
    rbf(3, 3)
    a("v_sqrt_f32 v3, v3")
    rbf(3, 3)
    a(f"v_rcp_f32 v3, v3\ns_waitcnt vmcnt({10+npf})")
    for i in range(5):
        a(f"v_lshlrev_b32 v{T+2*i}, 16, v{XB+i}\nv_and_b32 v{T+2*i+1}, 0xffff0000, v{XB+i}")
    for i in range(10): a(f"v_sub_f32 v{T+i}, v{T+i}, v2")
    for i in range(5): a(f"v_cvt_pk_bf16_f32 v{XB+i}, v{T+2*i}, v{T+2*i+1}")
    for i in range(5):
        a(f"v_lshlrev_b32 v{T+2*i}, 16, v{XB+i}\nv_and_b32 v{T+2*i+1}, 0xffff0000, v{XB+i}")
    for i in range(10): a(f"v_mul_f32 v{T+i}, v{T+i}, v3")
    for i in range(10): a(f"v_cvt_pk_bf16_f32 v{T+i}, v{T+i}, v{T+i}")
    for i in range(10):
        for t in range(4): a(f"v_and_b32 v{A+4*i+t}, v{T+i}, v{M+t}")
    stamp(3)
    a(f"s_lshl_b32 s{sT0}, s{sH}, 2\nv_mov_b32 v8, s{sT0}")
    extra = 0
    for i in range(10):
        a(f"s_waitcnt vmcnt({9-i+npf+extra})")
        if 10 - i == flagwait:
            a("global_load_dword v9, v8, s[24:25] offset:128 sc1"); extra = 1
        a(f"v_mfma_f32_16x16x32_bf16 {q(DD)}, {q(A+4*i)}, {q(W+4*i)}, {'0' if i == 0 else q(DD)}")
    if not extra: a("global_load_dword v9, v8, s[24:25] offset:128 sc1")
    stamp(4)
    a(f"""v_and_b32 v1, 7, v0
v_lshlrev_b32 v1, 5, v1
v_and_b32 v2, 16, v0
v_add_u32 v1, v1, v2
v_lshrrev_b32 v2, 5, v0
v_lshl_add_u32 v1, v2, 3, v1
s_lshl_b32 s{sT0}, s{sS}, 10
s_lshl_b32 s{sT1}, s{sW}, 8
s_add_u32 s{sT0}, s{sT0}, s{sT1}
v_add_u32 v1, s{sT0}, v1""")
    a(f"""v_permlane32_swap_b32 v{DD}, v{DD+2}
v_permlane32_swap_b32 v{DD+1}, v{DD+3}
v_add_f32_dpp v{DD}, v{DD+2}, v{DD} row_ror:8 {FULL}
v_add_f32_dpp v{DD+1}, v{DD+3}, v{DD+1} row_ror:8 {FULL}""")
    a(f"""v_and_b32 v2, 15, v0
v_lshlrev_b32 v2, 4, v2
v_and_b32 v3, 8, v0
v_lshl_add_u32 v3, v3, 4, v2
s_lshl_b32 s{sT0}, s{sW}, 7
s_add_u32 s{sT0}, s{sT0}, 256
s_cmp_lt_u32 s{sW}, 2
s_cselect_b64 vcc, -1, 0
s_cselect_b32 s{sT0}, s{sT1}, s{sT0}
v_cndmask_b32 v2, v3, v2, vcc
v_lshrrev_b32 v3, 4, v0
v_lshl_add_u32 v2, v3, 10, v2
v_add_u32 v2, s{sT0}, v2
v_add_u32 v10, 0x1000, v2
v_and_b32 v11, 31, v0
v_lshlrev_b32 v11, 2, v11
s_mov_b32 s54, 0x00ff00ff
s_mov_b32 s55, 0x00ff00ff
L_flag:
s_waitcnt vmcnt(0)
v_cmp_ne_u32 vcc, 0, v9
s_cbranch_vccnz L_flag_ok
global_load_dword v9, v8, s[24:25] offset:128 sc1
s_sub_i32 s{sCnt}, s{sCnt}, 1
s_cmp_gt_i32 s{sCnt}, 0
s_cbranch_scc1 L_flag
L_flag_ok:
s_mov_b64 exec, s[54:55]
global_store_dwordx2 v1, v[{DD}:{DD+1}], s[{sG}:{sG+1}] sc1
s_mov_b64 exec, -1""")
    stamp(5)
    a(f"""L_g1:
global_load_dwordx4 {q(W)}, v2, s[{sG}:{sG+1}] sc1
global_load_dwordx4 {q(W+4)}, v10, s[{sG}:{sG+1}] sc1
global_load_dword v9, v11, s[24:25] offset:128 sc1
s_waitcnt vmcnt(0)
v_max3_u32 v3, v{W}, v{W+1}, v{W+2}
v_max3_u32 v3, v3, v{W+3}, v{W+4}
v_max3_u32 v3, v3, v{W+5}, v{W+6}
v_add_u32 v9, -1, v9
v_max3_u32 v3, v3, v{W+7}, v9
v_cmp_eq_u32 vcc, -1, v3
s_cbranch_vccz L_g1_ok
s_sub_i32 s{sCnt}, s{sCnt}, 1
s_cmp_gt_i32 s{sCnt}, 0
s_cbranch_scc1 L_g1
L_g1_ok:""")
    stamp(6)
    for r in range(4): a(f"v_add_f32 v{W+r}, v{W+r}, v{W+4+r}")
    redscat(W)
    a(f"""v_cvt_pk_bf16_f32 v{W}, v{W}, v{W}
v_and_b32 v2, 15, v0
v_lshrrev_b32 v3, 4, v0
v_lshl_add_u32 v2, v2, 2, v3
s_cmp_lt_u32 s{sW}, 2
s_cbranch_scc0 L_glu
s_lshl_b32 s{sT0}, s{sW}, 6
v_add_lshl_u32 v2, v2, s{sT0}, 1
ds_write_b16 v2, v{W} offset:{LQ}
s_branch L_b1
L_glu:
v_and_b32 v{W}, 0xffff0000, v{W}
v_mul_f32 v3, 0xbfb8aa3b, v{W}
v_exp_f32 v3, v3
s_lshl_b32 s{sT0}, s{sW}, 5
v_add_f32 v3, 1.0, v3
v_rcp_f32 v3, v3
s_sub_u32 s{sT0}, s{sT0}, 64""")
    rbf(3, 3)
    a(f"""v_mul_f32_dpp v3, v{W}, v3 row_ror:8 {FULL}
v_add_lshl_u32 v2, v2, s{sT0}, 2
v_cvt_pk_bf16_f32 v3, v3, v3
s_mov_b64 exec, s[54:55]
ds_write_b32 v2, v3 offset:{LH}
s_mov_b64 exec, -1
L_b1:
s_waitcnt lgkmcnt(0)
s_barrier""")
    stamp(7)
    WD, WO, AF, ML = 20, 36, 100, 116
    a(f"""v_lshrrev_b32 v3, 4, v0
s_lshl_b32 s{sT0}, s{sW}, 6
v_lshl_add_u32 v2, v3, 4, s{sT0}
ds_read_b128 v[8:11], v2 offset:{LH}
s_mul_i32 s{sT0}, s{sH}, {128*1280}
s_mul_i32 s{sT1}, s{sS}, 160
s_add_u32 s{sT0}, s{sT0}, s{sT1}
s_add_u32 s28, s12, s{sT0}
s_addc_u32 s29, s13, 0
s_sub_u32 s30, 5242880, s{sT0}
s_mul_i32 s{sT0}, s{sH}, {64*1280}
s_add_u32 s{sT0}, s{sT0}, s{sT1}
s_add_u32 s32, s20, s{sT0}
s_addc_u32 s33, s21, 0
s_sub_u32 s34, 2211840, s{sT0}
s_cmp_lt_u32 s{sH}, 27
s_cselect_b32 s34, s34, 0
v_and_b32 v2, 15, v0
v_cmp_gt_u32 vcc, 10, v2
v_lshlrev_b32 v2, 4, v2
v_mov_b32 v12, 0x40000000
v_cndmask_b32 v2, v12, v2, vcc
s_mul_i32 s{sT0}, s{sW}, {32*1280}
s_movk_i32 s{sT1}, 1280
v_mad_u32_u24 v12, v3, s{sT1}, v2
v_add_u32 v12, s{sT0}, v12
s_movk_i32 s{sT1}, 5120
v_mad_u32_u24 v13, v3, s{sT1}, v2
s_mul_i32 s{sT0}, s{sW}, {16*1280}
v_add_u32 v13, s{sT0}, v13""")
    for t in range(4): a(f"v_cndmask_b32 v{ML+t}, 0, v{M+t}, s[54:55]")
    for t in range(4): a(f"v_cndmask_b32 v{M+t}, v{M+t}, 0, s[54:55]")
    a(f"""s_lshl_b32 s{sT0}, s{sW}, 10
s_add_u32 s{sT0}, s{sT0}, 8192
v_lshl_add_u32 v14, v0, 4, s{sT0}
v_and_b32 v15, 56, v0
v_add_u32 v15, 12288, v15
s_waitcnt lgkmcnt(0)""")
    for i in range(4):
        for t in range(4): a(f"v_and_b32 v{AF+4*i+t}, v{8+i}, v{M+t}")
    a("s_barrier")
    stamp(8)
    for i in range(4):
        a(f"buffer_load_dwordx4 {q(WD+4*i)}, v13, s[32:35], 0 offen offset:{1280*i}{nt}")
    a(f"s_mov_b32 s{sT0}, 0")
    for i in range(8):
        a(f"buffer_load_dwordx4 {q(WO+4*i)}, v12, s[28:31], s{sT0} offen{nt}")
        if i < 7: a(f"s_add_u32 s{sT0}, s{sT0}, 5120")
    stamp(9)
    a(f"""s_lshl_b32 s{sT0}, s{sW}, 10
v_lshlrev_b32 v16, 4, v0
v_add_u32 v17, s{sT0}, v16
v_and_b32 v1, 15, v0
v_lshrrev_b32 v2, 1, v1
v_lshlrev_b32 v2, 12, v2
v_and_b32 v3, 1, v1
v_lshl_add_u32 v2, v3, 5, v2
v_and_b32 v3, 16, v0
v_add_u32 v2, v2, v3
v_and_b32 v3, 32, v0
v_lshl_add_u32 v2, v3, 1, v2
s_mul_i32 s{sT0}, s{sS}, 20480
s_lshl_b32 s{sT1}, s{sH}, 7
s_add_u32 s{sT0}, s{sT0}, s{sT1}
v_add_u32 v18, s{sT0}, v2
s_mov_b32 s56, 0x03ff03ff
s_mov_b32 s57, 0x03ff03ff
s_barrier""")
    stamp(10)
    for i in range(4):
        a(f"s_waitcnt vmcnt({11-i})\nv_mfma_f32_16x16x32_bf16 {q(DD)}, {q(AF+4*i)}, {q(WD+4*i)}, {'0' if i == 0 else q(DD)}")
    a(f"""L_g2:
global_load_dwordx2 v[2:3], v15, s[{sG}:{sG+1}] sc1
global_load_dwordx4 v[8:11], v14, s[{sG}:{sG+1}] sc1
s_waitcnt vmcnt(0)
v_max3_u32 v1, v8, v9, v10
v_max3_u32 v19, v11, v2, v3
v_max_u32 v1, v1, v19
v_cmp_eq_u32 vcc, -1, v1
s_cbranch_vccz L_g2_ok
s_sub_i32 s{sCnt}, s{sCnt}, 1
s_cmp_gt_i32 s{sCnt}, 0
s_cbranch_scc1 L_g2
L_g2_ok:""")
    stamp(11)
    def red8(op, v, t):
        a(f"{op}_dpp v{v}, v{v}, v{v} row_ror:8 {FULL}")
        for p in ("16", "32"):
            a(f"v_mov_b32 v{t}, v{v}\nv_permlane{p}_swap_b32 v{t}, v{v}\n{op} v{v}, v{v}, v{t}")
    a("v_mov_b32 v1, v2")
    red8("v_max_f32", 1, 19)
    a("v_sub_f32 v2, v2, v1\nv_mul_f32 v2, 0x3fb8aa3b, v2\nv_exp_f32 v2, v2")
    a("v_mul_f32 v3, v3, v2")
    for r in range(4): a(f"v_mul_f32 v{8+r}, v{8+r}, v2")
    red8("v_add_f32", 3, 19)
    redscat(8)
    a(f"v_rcp_f32 v3, v3\nv_add_f32_dpp v8, v8, v8 row_ror:8 {FULL}\nv_mul_f32 v8, v8, v3\nv_cvt_pk_bf16_f32 v8, v8, v8")
    for i in range(8):
        for t in range(4): a(f"v_and_b32_dpp v{A+4*i+t}, v8, v{ML+t} row_newbcast:{i} {FULL}")
        if i: a(f"v_mfma_f32_16x16x32_bf16 {q(DD)}, {q(A+4*i-4)}, {q(WO+4*i-4)}, {q(DD)}")
    a(f"v_mfma_f32_16x16x32_bf16 {q(DD)}, {q(A+28)}, {q(WO+28)}, {q(DD)}")
    a(f"ds_write_b128 v17, {q(DD)} offset:{LY}\ns_waitcnt lgkmcnt(0)\ns_barrier")
    stamp(12)
    a(f"""s_cmp_eq_u32 s{sW}, 0
s_cbranch_scc0 L_notpub""")
    for k in range(4): a(f"ds_read_b128 {q(20+4*k)}, v16 offset:{LY+1024*k}")
    a("s_waitcnt lgkmcnt(2)")
    for r in range(4): a(f"v_add_f32 v{20+r}, v{20+r}, v{24+r}")
    a("s_waitcnt lgkmcnt(0)")
    for r in range(4): a(f"v_add_f32 v{28+r}, v{28+r}, v{32+r}")
    for r in range(4): a(f"v_add_f32 v{20+r}, v{20+r}, v{28+r}")
    a(f"""s_mov_b64 exec, s[56:57]
global_store_dwordx4 v18, v[20:23], s[{sM3}:{sM3+1}] sc1
s_mov_b64 exec, -1
s_branch L_done
L_notpub:
s_cmp_eq_u32 s{sW}, 1
s_cbranch_scc0 L_done
s_cmp_ge_u32 s{sH}, 27
s_cbranch_scc0 L_done
s_sub_u32 s{sT0}, s{sH}, 27
s_lshl_b32 s{sT0}, s{sT0}, 3
s_add_u32 s{sT0}, s{sT0}, s{sS}
s_lshl_b32 s{sT1}, s{sT0}, 12
v_add_u32 v16, s{sT1}, v16
v_and_b32 v1, 3, v0
v_lshrrev_b32 v2, 4, v0
v_lshl_add_u32 v1, v1, 2, v2
s_lshl_b32 s{sT0}, s{sT0}, 4
v_add_lshl_u32 v1, v1, s{sT0}, 1
global_load_ushort v2, v1, s[4:5]
L_g3:""")
    for k in range(4): a(f"global_load_dwordx4 {q(20+4*k)}, v16, s[{sM3}:{sM3+1}] offset:{1024*k} sc1")
    a("s_waitcnt vmcnt(2)\nv_max3_u32 v3, v20, v21, v22\nv_max3_u32 v3, v3, v23, v24\nv_max3_u32 v3, v3, v25, v26")
    a("s_waitcnt vmcnt(0)\nv_max3_u32 v19, v27, v28, v29\nv_max3_u32 v3, v3, v30, v31\nv_max3_u32 v19, v19, v32, v33\nv_max3_u32 v3, v3, v34, v35\nv_max_u32 v3, v3, v19")
    a(f"""v_cmp_eq_u32 vcc, -1, v3
s_cbranch_vccz L_g3_ok
s_sub_i32 s{sCnt}, s{sCnt}, 1
s_cmp_gt_i32 s{sCnt}, 0
s_cbranch_scc1 L_g3
L_g3_ok:""")
    stamp(13)
    for r in range(4): a(f"v_add_f32 v{20+r}, v{20+r}, v{24+r}")
    for r in range(4): a(f"v_add_f32 v{28+r}, v{28+r}, v{32+r}")
    for r in range(4): a(f"v_add_f32 v{20+r}, v{20+r}, v{28+r}")
    redscat(20)
    a(f"v_lshlrev_b32 v2, 16, v2\nv_add_f32_dpp v20, v20, v20 row_ror:8 {FULL}")
    rbf(20, 20)
    a("v_add_f32 v2, v2, v20")
    rbf(2, 2)
    a(f"""v_add_f32_dpp v2, v20, v2 row_shl:4 {FULL}
s_mov_b32 s56, 0x000f000f
s_mov_b32 s57, 0x000f000f
v_cvt_pk_bf16_f32 v2, v2, v2
s_mov_b64 exec, s[56:57]
global_store_short v1, v2, s[22:23]
s_mov_b64 exec, -1
s_branch L_done""")
    KR, VR, S, Q = 16, 80, 144, 8
    a("L_main:")
    a(f"""s_sub_u32 s{sW}, s{sW}, 4
s_lshl_b32 s{sT0}, s{sW}, 12
v_lshl_add_u32 v1, v0, 4, s{sT0}
s_lshl_b32 s{sT0}, s{sH}, 21
s_lshl_b32 s{sT1}, s{sS}, 16
s_add_u32 s{sT0}, s{sT0}, s{sT1}
s_add_u32 s{sT0}, s{sT0}, 0x180000
s_mov_b32 s30, 0x10000
s_mov_b32 s34, 0x10000""")
    if rot:
        a(f"s_lshr_b32 s{sT1}, s2, 3\ns_add_u32 s{sT1}, s{sT1}, s2\ns_lshl_b32 s{sT1}, s{sT1}, 14")
    else:
        a(f"s_mov_b32 s{sT1}, 0")
    for t in range(4):
        a(f"s_and_b32 s{36+t}, s{sT1}, 0xc000")
        if t < 3: a(f"s_add_u32 s{sT1}, s{sT1}, 0x4000")
    a(f"""s_or_b32 s{sT2}, s{sS}, s{sW}
s_waitcnt lgkmcnt(0)
s_add_u32 s28, s6, s{sT0}
s_addc_u32 s29, s7, 0
s_add_u32 s32, s8, s{sT0}
s_addc_u32 s33, s9, 0""")
    groupptr()
    a(f"""s_cmp_eq_u32 s{sT2}, 0
s_cbranch_scc0 L_noclear
v_mov_b32 v8, -1
v_mov_b32 v9, -1
v_mov_b32 v10, -1
v_mov_b32 v11, -1
v_add_u32 v2, 0x1000, v1
v_add_u32 v3, 0x3000, v1
s_mul_i32 s{sT0}, s{sH}, 5120
s_add_u32 s{sT0}, s{sT0}, 1024
v_add_u32 v12, s{sT0}, v1""")
    for k in range(8): a(f"global_store_dwordx4 v2, v[8:11], s[{sG}:{sG+1}] offset:{1024*k-4096} sc1")
    for k in range(5): a(f"global_store_dwordx4 v3, v[8:11], s[{sG}:{sG+1}] offset:{1024*k-4096} sc1")
    for k in range(5): a(f"global_store_dwordx4 v12, v[8:11], s[{sM3}:{sM3+1}] offset:{1024*k-1024} sc1")
    a(f"""s_lshl_b32 s{sT0}, s{sH}, 2
v_mov_b32 v2, s{sT0}
v_mov_b32 v3, 1
s_waitcnt vmcnt(0)
s_mov_b64 exec, 1
global_store_dword v2, v3, s[24:25] offset:128 sc1
s_mov_b64 exec, -1
L_noclear:""")
    stamp(1)
    def ld(n):
        i = n & 15
        base, srd = (KR, "s[28:31]") if n < 16 else (VR, "s[32:35]")
        a(f"buffer_load_dwordx4 {q(base+4*i)}, v1, {srd}, s{36+(i>>2)} offen offset:{1024*(i&3)}{nt}")
    for n in range(D0): ld(n)
    masks()
    a(f"v_and_b32 v2, 15, v0\nv_lshlrev_b32 v12, 4, v2")
    a("s_mov_b32 s54, 0xcccccccc\ns_mov_b32 s55, 0xcccccccc\ns_mov_b32 s56, 0xaaaaaaaa\ns_mov_b32 s57, 0xaaaaaaaa")
    if D0 < D: a(f"s_waitcnt vmcnt({D0-1})")
    for n in range(D0, 16 + NV1):
        if n >= D: a(f"s_waitcnt vmcnt({D-1})")
        ld(n)
        if n == 15: stamp(2)
    stamp(3)
    a("s_barrier")
    stamp(4)
    a(f"ds_read_b128 {q(Q)}, v12 offset:{LQ}")
    a(f"s_waitcnt vmcnt({min(NV1, 63)}) lgkmcnt(0)")
    nxt = 16 + NV1
    for i0 in range(0, 16, 4):
        for r in range(4):
            for i in range(i0, i0 + 4):
                a(f"v_dot2_f32_bf16 v{S+i}, v{KR+4*i+r}, v{Q+r}, {'0' if r == 0 else 'v%d' % (S+i)}")
            if r == 3 or r == 1:
                if nxt < 32: ld(nxt); nxt += 1
    for i in range(8):
        a(f"v_add_f32_dpp v{S+i}, v{S+i}, v{S+i} row_ror:8 row_mask:0xf bank_mask:0x3")
    for i in range(8):
        a(f"v_add_f32_dpp v{S+i}, v{S+i+8}, v{S+i+8} row_ror:8 row_mask:0xf bank_mask:0xc")
    for i in range(4):
        a(f"v_add_f32_dpp v{S+i}, v{S+i}, v{S+i} row_shl:4 row_mask:0xf bank_mask:0x5")
    for i in range(4):
        a(f"v_add_f32_dpp v{S+i}, v{S+i+4}, v{S+i+4} row_shr:4 row_mask:0xf bank_mask:0xa")
    while nxt < 32: ld(nxt); nxt += 1
    for i in range(4):
        a(f"v_add_f32_dpp v{S+i}, v{S+i}, v{S+i} quad_perm:[2,3,0,1] {FULL}")
    a(f"v_cndmask_b32 v{S}, v{S}, v{S+2}, s[54:55]\nv_cndmask_b32 v{S+1}, v{S+1}, v{S+3}, s[54:55]")
    for i in range(2):
        a(f"v_add_f32_dpp v{S+i}, v{S+i}, v{S+i} quad_perm:[1,0,3,2] {FULL}")
    a(f"v_cndmask_b32 v{S}, v{S}, v{S+1}, s[56:57]")
    rbf(S, S)
    a(f"v_mul_f32 v{S}, 0x3db504f3, v{S}")
    rbf(S, S)
    a(f"v_mov_b32 v2, v{S}")
    allred("v_max_f32", 2, 3)
    a(f"""s_lshl_b32 s{sT0}, s{sW}, 2
v_mov_b32 v13, s{sT0}
v_mov_b32 v14, 0
ds_write_b32 v13, v2 offset:{LMX}
s_waitcnt lgkmcnt(0)""")
    stamp(5)
    a(f"""s_barrier
ds_read_b128 v[8:11], v14 offset:{LMX}
v_and_b32 v3, 15, v0
v_lshlrev_b32 v3, 5, v3
v_and_b32 v12, 16, v0
v_add_u32 v12, v3, v12
s_lshl_b32 s{sT0}, s{sW}, 9
v_add_u32 v15, s{sT0}, v12
s_waitcnt lgkmcnt(0)
v_max3_f32 v2, v8, v9, v10
v_max_f32 v2, v2, v11
v_sub_f32 v{S}, v{S}, v2
v_mul_f32 v{S}, 0x3fb8aa3b, v{S}
v_exp_f32 v3, v{S}
v_cvt_pk_bf16_f32 v{S}, v3, v3""")
    allred("v_add_f32", 3, S+1)
    a(f"ds_write_b32 v13, v3 offset:{LL}")
    for i in range(16):
        for t in range(4): a(f"v_and_b32_dpp v{KR+4*i+t}, v{S}, v{M+t} row_newbcast:{i} {FULL}")
    stamp(6)
    for i in range(16):
        a(f"s_waitcnt vmcnt({15-i})\nv_mfma_f32_16x16x32_bf16 {q(S+4)}, {q(KR+4*i)}, {q(VR+4*i)}, {'0' if i == 0 else q(S+4)}")
    stamp(7)
    a(f"""s_mov_b32 exec_hi, 0
ds_write_b128 v15, {q(S+4)} offset:{LO}
s_waitcnt lgkmcnt(0)
s_barrier""")
    stamp(8)
    a(f"""s_cmp_eq_u32 s{sW}, 0
s_cbranch_scc0 L_mdone
v_lshlrev_b32 v12, 4, v0""")
    for k in range(4): a(f"ds_read_b128 {q(16+4*k)}, v12 offset:{LO+512*k}")
    a(f"""ds_read_b128 v[8:11], v14 offset:{LL}
v_lshrrev_b32 v13, 3, v0
v_lshlrev_b32 v13, 10, v13
v_and_b32 v12, 0x70, v12
v_add_u32 v13, v13, v12
s_lshl_b32 s{sT0}, s{sS}, 7
s_add_u32 s{sT0}, s{sT0}, 8192
v_add_u32 v13, s{sT0}, v13
s_lshl_b32 s{sT0}, s{sS}, 3
s_add_u32 s{sT0}, s{sT0}, 12288
v_mov_b32 v14, s{sT0}
s_waitcnt lgkmcnt(3)""")
    for r in range(4): a(f"v_add_f32 v{16+r}, v{16+r}, v{20+r}")
    a("s_waitcnt lgkmcnt(1)")
    for r in range(4): a(f"v_add_f32 v{24+r}, v{24+r}, v{28+r}")
    for r in range(4): a(f"v_add_f32 v{16+r}, v{16+r}, v{24+r}")
    a(f"""global_store_dwordx4 v13, v[16:19], s[{sG}:{sG+1}] sc1
s_waitcnt lgkmcnt(0)
v_add_f32 v8, v8, v9
v_add_f32 v10, v10, v11
v_add_f32 v3, v8, v10
s_mov_b64 exec, 1
global_store_dwordx2 v14, v[2:3], s[{sG}:{sG+1}] sc1""")
    stamp(9)
    a(f"L_mdone:\ns_mov_b64 exec, -1")
    if stamps: a(f"s_add_u32 s{sW}, s{sW}, 4")
    a("L_done:")
    if stamps:
        a("s_waitcnt vmcnt(0)")
        stamp(14)
        a("s_waitcnt lgkmcnt(0)\nv_mov_b32 v4, 0")
        for n in range(15): a(f"v_writelane_b32 v4, s{64+2*n}, {n}")
        a(f"v_writelane_b32 v4, s{sCnt}, 15")
        a(f"""s_lshl_b32 s{sT0}, s2, 3
s_add_u32 s{sT0}, s{sT0}, s{sW}
s_lshl_b32 s{sT0}, s{sT0}, 8
s_add_u32 s{sT0}, s{sT0}, 0x1000000
v_lshl_add_u32 v5, v0, 2, s{sT0}
global_store_dword v5, v4, s[26:27]""")
        if dbgwave is not None:
            a(f"""s_lshl_b32 s{sT0}, s2, 3
s_add_u32 s{sT0}, s{sT0}, s{sW}
s_cmp_eq_u32 s{sT0}, {dbgwave}
s_cbranch_scc0 L_end
v_subrev_u32 v4, s64, v4
v_lshlrev_b32 v5, 2, v0
s_mov_b64 exec, 0x7fff
global_store_dword v5, v4, s[24:25]""")
    a("L_end:\ns_endpgm")
    o.append(f""".section .rodata,"a"
.p2align 6
.amdhsa_kernel {KN}
  .amdhsa_next_free_vgpr 160
  .amdhsa_next_free_sgpr 102
  .amdhsa_accum_offset 160
  .amdhsa_group_segment_fixed_size 0
  .amdhsa_kernarg_size 96
  .amdhsa_user_sgpr_count 2
  .amdhsa_user_sgpr_kernarg_segment_ptr 1
  .amdhsa_system_sgpr_workgroup_id_x 1
  .amdhsa_float_denorm_mode_32 3
.end_amdhsa_kernel""")
    txt = "\n".join(o)
    if stamps:
        import re
        txt = re.sub(r"lgkmcnt\(\d+\)", "lgkmcnt(0)", txt)
    return pad(txt) + "\n"
if __name__ == "__main__":
    kw = eval("dict(" + (sys.argv[2] if len(sys.argv) > 2 else "") + ")")
    open(sys.argv[1], "w").write(gen(**kw))
ROLES = {"front": slice(0, 4), "main": slice(4, 8)}
```

```python
import sys
from asmlib import pad
KN = "parallel_sum__sliding_block_cached__glu_gated_glu__decode_kernel"
FULL = "row_mask:0xf bank_mask:0xf"
def q(r, n=4): return f"v[{r}:{r+n-1}]"

def gen(stamps=False, D=6, D0=2, NV1=8, nt=" nt", rot=True, dual=True, alt=7, g1wait=0, g2wait=12, prefetch=0, spin=100000, dbgwave=None):
    o = []
    def a(s):
        for l in s.split("\n"): o.append("    " + l.strip() if not l.strip().endswith(":") else l.strip())
    nst = [0]
    def stamp(k):
        if stamps: a(f"s_memrealtime s[{64+2*k}:{65+2*k}]")
    def allred(op, v, t):
        for m in ("quad_perm:[1,0,3,2]", "quad_perm:[2,3,0,1]", "row_half_mirror", "row_mirror"):
            a(f"{op}_dpp v{v}, v{v}, v{v} {m} {FULL}")
        for p in ("16", "32"):
            a(f"v_mov_b32 v{t}, v{v}\nv_permlane{p}_swap_b32 v{t}, v{v}\n{op} v{v}, v{v}, v{t}")
    def redscat(r):
        a(f"v_permlane32_swap_b32 v{r}, v{r+2}\nv_permlane32_swap_b32 v{r+1}, v{r+3}")
        a(f"v_add_f32 v{r}, v{r}, v{r+2}\nv_add_f32 v{r+1}, v{r+1}, v{r+3}")
        a(f"v_permlane16_swap_b32 v{r}, v{r+1}\nv_add_f32 v{r}, v{r}, v{r+1}")
    def rbf(d, s):
        a(f"v_cvt_pk_bf16_f32 v{d}, v{s}, v{s}\nv_and_b32 v{d}, 0xffff0000, v{d}")
    sH, sS, sW, sCnt, sT0, sT1, sT2 = 40, 41, 3, 42, 43, 44, 45
    sG = 46
    sM3 = 48
    sRS = 50
    sE, sTg = 51, 58
    def epoch_load(): a(f"s_load_dword s{sE}, s[26:27], 0xc0000")
    def epoch_tags():
        a(f"s_waitcnt lgkmcnt(0)\ns_add_u32 s{sE}, s{sE}, 0x1111")
        for r in range(4): a(f"s_bfe_u32 s{sTg+r}, s{sE}, {0x40000 + 4*r}")
    def tag(r0, n=4):
        for r in range(n): a(f"v_and_or_b32 v{r0+r}, v{r0+r}, -16, s{sTg+r}")
    def untag(r0, n=4):
        for r in range(n): a(f"v_xor_b32 v{r0+r}, s{sTg+r}, v{r0+r}")
    def gstore(op, va, data):
        a(f"{op} {va}, {data}, s[{sG}:{sG+1}]")
        if dual: a(f"{op} {va}, {data}, s[62:63] sc1")
    def tagcheck(regs, t, lab, alt_=False):
        regs = list(regs)
        a(f"v_or3_b32 v{t}, v{regs[0]}, v{regs[1]}, v{regs[2]}"); regs = regs[3:]
        while len(regs) >= 2:
            a(f"v_or3_b32 v{t}, v{t}, v{regs[0]}, v{regs[1]}"); regs = regs[2:]
        if regs: a(f"v_or_b32 v{t}, v{t}, v{regs[0]}")
        a(f"""v_and_b32 v{t}, 15, v{t}
v_cmp_ne_u32 vcc, 0, v{t}
s_cbranch_vccz {lab}_ok
s_sub_i32 s{sCnt}, s{sCnt}, 1""")
        if alt_ and dual:
            a(f"""s_add_u32 s98, s98, 1
s_and_b32 s99, s98, {alt}
s_cselect_b64 s[96:97], s[{sG}:{sG+1}], s[62:63]""")
        a(f"""s_cmp_gt_i32 s{sCnt}, 0
s_cbranch_scc1 {lab}
{lab}_ok:""")
    LQ, LH, LMX, LL, LO, LY = 0, 256, 512, 528, 1024, 3072
    M = 4
    hdr = open("cdna_kernels/" + KN[:-7] + ".s.ref").read().split("; Override")[0]
    o.append(hdr.rstrip())
    o.append("; @launch grid=(256,1,1) block=(512,1,1) lds=8192")
    o.append('.amdgcn_target "amdgcn-amd-amdhsa--gfx950"\n.text')
    o.append(f".globl {KN}\n.p2align 8\n.type {KN},@function\n{KN}:")
    if stamps:
        for k in range(1, 15): a(f"s_mov_b32 s{64+2*k}, 0")
    stamp(0)
    a(f"""s_load_dwordx16 s[4:19], s[0:1], 0
s_load_dwordx8 s[20:27], s[0:1], 64
s_cmp_ge_u32 s2, 256
s_cbranch_scc1 L_end
v_lshrrev_b32 v1, 6, v0
v_and_b32 v0, 63, v0
s_and_b32 s{sH}, s2, 31
v_readfirstlane_b32 s{sW}, v1
s_lshr_b32 s{sS}, s2, 5
s_mov_b32 s31, 0x20000
s_mov_b32 s35, 0x20000
s_mov_b32 s{sCnt}, {spin}
s_cmp_ge_u32 s{sW}, 4
s_cbranch_scc1 L_main""")
    def masks():
        a(f"""v_and_b32 v2, 1, v0
v_lshlrev_b32 v2, 4, v2
v_mov_b32 v3, 0xffff
v_lshlrev_b32 v2, v2, v3
v_bfe_u32 v3, v0, 1, 2""")
        for t in range(4):
            a(f"v_cmp_eq_u32 vcc, {t}, v3\nv_cndmask_b32 v{M+t}, 0, v2, vcc")
    def groupptr():
        a(f"""s_lshl_b32 s{sT0}, s{sH}, 14
s_add_u32 s{sG}, s26, s{sT0}
s_addc_u32 s{sG+1}, s27, 0
s_add_u32 s62, s{sG}, 0x100000
s_addc_u32 s63, s{sG+1}, 0
s_mov_b64 s[96:97], s[{sG}:{sG+1}]
s_add_u32 s{sM3}, s26, 0x80000
s_addc_u32 s{sM3+1}, s27, 0""")
    XA, XB, W, A, T, DD = 8, 14, 20, 68, 108, 124
    a(f"""s_cmp_lt_u32 s{sW}, 2
s_movk_i32 s{sRS}, 3456
s_cselect_b32 s{sRS}, 8192, s{sRS}
v_lshrrev_b32 v1, 3, v0
v_mul_u32_u24 v1, 10, v1
s_mul_i32 s{sT0}, s{sS}, 80
v_add_u32 v1, s{sT0}, v1
v_mul_u32_u24 v2, 20, v0
v_lshlrev_b32 v3, 1, v1
v_mul_u32_u24 v1, s{sRS}, v1
v_and_b32 v19, 7, v0
v_lshl_add_u32 v1, v19, 4, v1
s_lshl_b32 s{sT0}, s{sH}, 8
s_lshl_b32 s{sT1}, s{sW}, 7
s_add_u32 s{sT0}, s{sT0}, s{sT1}
s_lshl_b32 s{sT1}, s{sH}, 7
s_sub_u32 s30, 2211840, s{sT1}
s_cmp_lt_u32 s{sH}, 27
s_cselect_b32 s30, s30, 0
s_sub_u32 s{sT2}, 5242880, s{sT0}
s_cmp_lt_u32 s{sW}, 2
s_cselect_b32 s30, s{sT2}, s30
s_cselect_b32 s{sT0}, s{sT0}, s{sT1}
s_waitcnt lgkmcnt(0)
global_load_dwordx4 {q(XA)}, v2, s[4:5]
global_load_dword v{XA+4}, v2, s[4:5] offset:16
global_load_dwordx4 {q(XB)}, v3, s[4:5]
global_load_dword v{XB+4}, v3, s[4:5] offset:16
s_cselect_b32 s28, s10, s16
s_cselect_b32 s29, s11, s17
s_cmp_eq_u32 s{sW}, 3
s_cselect_b32 s28, s18, s28
s_cselect_b32 s29, s19, s29
s_add_u32 s28, s28, s{sT0}
s_addc_u32 s29, s29, 0
s_mov_b32 s{sT1}, 0""")
    for i in range(10):
        a(f"buffer_load_dwordx4 {q(W+4*i)}, v1, s[28:31], s{sT1} offen{nt}")
        if i < 9: a(f"s_add_u32 s{sT1}, s{sT1}, s{sRS}")
    npf = 0
    if prefetch:
        a(f"""s_getpc_b64 s[52:53]
s_and_b32 s52, s52, 0xffffff00
v_lshlrev_b32 v2, 7, v0
v_min_u32 v2, {prefetch}, v2
global_load_dword v13, v2, s[52:53]""")
        npf = 1
    epoch_load()
    stamp(1)
    masks(); groupptr()
    a(f"s_waitcnt vmcnt({12+npf})")
    stamp(2)
    for i in range(5):
        a(f"v_lshlrev_b32 v{T+2*i}, 16, v{XA+i}\nv_and_b32 v{T+2*i+1}, 0xffff0000, v{XA+i}")
    a(f"v_add_f32 v2, v{T}, v{T+1}\nv_add_f32 v3, v{T+2}, v{T+3}")
    for i in range(2, 5):
        a(f"v_add_f32 v2, v2, v{T+2*i}\nv_add_f32 v3, v3, v{T+2*i+1}")
    a("v_add_f32 v2, v2, v3")
    allred("v_add_f32", 2, 3)
    a("v_mul_f32 v2, 0x3acccccd, v2")
    for i in range(10): a(f"v_sub_f32 v{T+i}, v{T+i}, v2")
    a(f"v_mul_f32 v3, v{T}, v{T}\nv_mul_f32 v19, v{T+1}, v{T+1}")
    for i in range(1, 5):
        a(f"v_fmac_f32 v3, v{T+2*i}, v{T+2*i}\nv_fmac_f32 v19, v{T+2*i+1}, v{T+2*i+1}")
    a("v_add_f32 v3, v3, v19")
    allred("v_add_f32", 3, 19)
    a("v_mul_f32 v3, 0x3acccccd, v3")
    rbf(2, 2); rbf(3, 3)
    a("v_add_f32 v3, 0x3727c5ac, v3")
    rbf(3, 3)
    a("v_sqrt_f32 v3, v3")
    rbf(3, 3)
    a(f"v_rcp_f32 v3, v3\ns_waitcnt vmcnt({10+npf})")
    for i in range(5):
        a(f"v_lshlrev_b32 v{T+2*i}, 16, v{XB+i}\nv_and_b32 v{T+2*i+1}, 0xffff0000, v{XB+i}")
    for i in range(10): a(f"v_sub_f32 v{T+i}, v{T+i}, v2")
    for i in range(5): a(f"v_cvt_pk_bf16_f32 v{XB+i}, v{T+2*i}, v{T+2*i+1}")
    for i in range(5):
        a(f"v_lshlrev_b32 v{T+2*i}, 16, v{XB+i}\nv_and_b32 v{T+2*i+1}, 0xffff0000, v{XB+i}")
    for i in range(10): a(f"v_mul_f32 v{T+i}, v{T+i}, v3")
    for i in range(10): a(f"v_cvt_pk_bf16_f32 v{T+i}, v{T+i}, v{T+i}")
    for i in range(10):
        for t in range(4): a(f"v_and_b32 v{A+4*i+t}, v{T+i}, v{M+t}")
    stamp(3)
    epoch_tags()
    for i in range(10):
        a(f"s_waitcnt vmcnt({9-i+npf})")
        a(f"v_mfma_f32_16x16x32_bf16 {q(DD)}, {q(A+4*i)}, {q(W+4*i)}, {'0' if i == 0 else q(DD)}")
    stamp(4)
    a(f"""v_and_b32 v1, 7, v0
v_lshlrev_b32 v1, 5, v1
v_and_b32 v2, 16, v0
v_add_u32 v1, v1, v2
s_lshl_b32 s{sT0}, s{sS}, 10
s_lshl_b32 s{sT1}, s{sW}, 8
s_add_u32 s{sT0}, s{sT0}, s{sT1}
v_add_u32 v1, s{sT0}, v1""")
    a(f"""v_permlane32_swap_b32 v{DD}, v{DD+2}
v_permlane32_swap_b32 v{DD+1}, v{DD+3}
v_add_f32_dpp v{DD}, v{DD+2}, v{DD} row_ror:8 {FULL}
v_add_f32_dpp v{DD+1}, v{DD+3}, v{DD+1} row_ror:8 {FULL}
v_permlane32_swap_b32 v{DD}, v{DD+2}
v_permlane32_swap_b32 v{DD+1}, v{DD+3}""")
    tag(DD)
    a("s_mov_b64 exec, 0x00ff00ff")
    gstore("global_store_dwordx4", "v1", q(DD))
    a("s_mov_b64 exec, -1")
    stamp(5)
    a(f"""v_and_b32 v2, 15, v0
v_lshlrev_b32 v2, 4, v2
v_and_b32 v3, 8, v0
v_lshl_add_u32 v3, v3, 4, v2
s_lshl_b32 s{sT0}, s{sW}, 7
s_add_u32 s{sT0}, s{sT0}, 256
s_cmp_lt_u32 s{sW}, 2
s_cselect_b64 vcc, -1, 0
s_cselect_b32 s{sT0}, s{sT1}, s{sT0}
v_cndmask_b32 v2, v3, v2, vcc
v_lshrrev_b32 v3, 4, v0
v_lshl_add_u32 v2, v3, 10, v2
v_add_u32 v2, s{sT0}, v2
v_add_u32 v10, 0x1000, v2
s_mov_b32 s54, 0x00ff00ff
s_mov_b32 s55, 0x00ff00ff""")
    if g1wait: a("s_waitcnt vmcnt(0)")
    a(f"""s_mov_b32 s98, 0
L_g1:
global_load_dwordx4 {q(W)}, v2, s[96:97] sc1
global_load_dwordx4 {q(W+4)}, v10, s[96:97] sc1
s_waitcnt vmcnt(0)""")
    untag(W); untag(W+4)
    tagcheck(range(W, W+8), 3, "L_g1", True)
    stamp(6)
    for r in range(4): a(f"v_add_f32 v{W+r}, v{W+r}, v{W+4+r}")
    redscat(W)
    a(f"""v_cvt_pk_bf16_f32 v{W}, v{W}, v{W}
v_and_b32 v2, 15, v0
v_lshrrev_b32 v3, 4, v0
v_lshl_add_u32 v2, v2, 2, v3
s_cmp_lt_u32 s{sW}, 2
s_cbranch_scc0 L_glu
s_lshl_b32 s{sT0}, s{sW}, 6
v_add_lshl_u32 v2, v2, s{sT0}, 1
ds_write_b16 v2, v{W} offset:{LQ}
s_branch L_b1
L_glu:
v_and_b32 v{W}, 0xffff0000, v{W}
v_mul_f32 v3, 0xbfb8aa3b, v{W}
v_exp_f32 v3, v3
s_lshl_b32 s{sT0}, s{sW}, 5
v_add_f32 v3, 1.0, v3
v_rcp_f32 v3, v3
s_sub_u32 s{sT0}, s{sT0}, 64""")
    rbf(3, 3)
    a(f"""v_mul_f32_dpp v3, v{W}, v3 row_ror:8 {FULL}
v_add_lshl_u32 v2, v2, s{sT0}, 2
v_cvt_pk_bf16_f32 v3, v3, v3
s_mov_b64 exec, s[54:55]
ds_write_b32 v2, v3 offset:{LH}
s_mov_b64 exec, -1
L_b1:
s_waitcnt lgkmcnt(0)
s_barrier""")
    stamp(7)
    WD, WO, AF, ML = 20, 36, 100, 116
    a(f"""v_lshrrev_b32 v3, 4, v0
s_lshl_b32 s{sT0}, s{sW}, 6
v_lshl_add_u32 v2, v3, 4, s{sT0}
ds_read_b128 v[8:11], v2 offset:{LH}
s_mul_i32 s{sT0}, s{sH}, {128*1280}
s_mul_i32 s{sT1}, s{sS}, 160
s_add_u32 s{sT0}, s{sT0}, s{sT1}
s_add_u32 s28, s12, s{sT0}
s_addc_u32 s29, s13, 0
s_sub_u32 s30, 5242880, s{sT0}
s_mul_i32 s{sT0}, s{sH}, {64*1280}
s_add_u32 s{sT0}, s{sT0}, s{sT1}
s_add_u32 s32, s20, s{sT0}
s_addc_u32 s33, s21, 0
s_sub_u32 s34, 2211840, s{sT0}
s_cmp_lt_u32 s{sH}, 27
s_cselect_b32 s34, s34, 0
v_and_b32 v2, 15, v0
v_cmp_gt_u32 vcc, 10, v2
v_lshlrev_b32 v2, 4, v2
v_mov_b32 v12, 0x40000000
v_cndmask_b32 v2, v12, v2, vcc
s_mul_i32 s{sT0}, s{sW}, {32*1280}
s_movk_i32 s{sT1}, 1280
v_mad_u32_u24 v12, v3, s{sT1}, v2
v_add_u32 v12, s{sT0}, v12
s_movk_i32 s{sT1}, 5120
v_mad_u32_u24 v13, v3, s{sT1}, v2
s_mul_i32 s{sT0}, s{sW}, {16*1280}
v_add_u32 v13, s{sT0}, v13""")
    for t in range(4): a(f"v_cndmask_b32 v{ML+t}, 0, v{M+t}, s[54:55]")
    for t in range(4): a(f"v_cndmask_b32 v{M+t}, v{M+t}, 0, s[54:55]")
    a(f"""s_lshl_b32 s{sT0}, s{sW}, 10
s_add_u32 s{sT0}, s{sT0}, 8192
v_lshl_add_u32 v14, v0, 4, s{sT0}
v_and_b32 v15, 56, v0
v_lshlrev_b32 v15, 4, v15
v_add_u32 v15, 12288, v15
s_waitcnt lgkmcnt(0)""")
    for i in range(4):
        for t in range(4): a(f"v_and_b32 v{AF+4*i+t}, v{8+i}, v{M+t}")
    a("s_barrier")
    stamp(8)
    for i in range(4):
        a(f"buffer_load_dwordx4 {q(WD+4*i)}, v13, s[32:35], 0 offen offset:{1280*i}{nt}")
    a(f"s_mov_b32 s{sT0}, 0")
    for i in range(8):
        a(f"buffer_load_dwordx4 {q(WO+4*i)}, v12, s[28:31], s{sT0} offen{nt}")
        if i < 7: a(f"s_add_u32 s{sT0}, s{sT0}, 5120")
    stamp(9)
    a(f"""s_lshl_b32 s{sT0}, s{sW}, 10
v_lshlrev_b32 v16, 4, v0
v_add_u32 v17, s{sT0}, v16
v_and_b32 v1, 15, v0
v_lshrrev_b32 v2, 1, v1
v_lshlrev_b32 v2, 12, v2
v_and_b32 v3, 1, v1
v_lshl_add_u32 v2, v3, 5, v2
v_and_b32 v3, 16, v0
v_add_u32 v2, v2, v3
v_and_b32 v3, 32, v0
v_lshl_add_u32 v2, v3, 1, v2
s_mul_i32 s{sT0}, s{sS}, 20480
s_lshl_b32 s{sT1}, s{sH}, 7
s_add_u32 s{sT0}, s{sT0}, s{sT1}
v_add_u32 v18, s{sT0}, v2
s_mov_b32 s56, 0x03ff03ff
s_mov_b32 s57, 0x03ff03ff
s_barrier""")
    stamp(10)
    for i in range(4):
        a(f"s_waitcnt vmcnt({11-i})\nv_mfma_f32_16x16x32_bf16 {q(DD)}, {q(AF+4*i)}, {q(WD+4*i)}, {'0' if i == 0 else q(DD)}")
    if g2wait < 8: a(f"s_waitcnt vmcnt({g2wait})")
    a(f"""s_mov_b32 s98, 0
s_mov_b64 s[96:97], s[{sG}:{sG+1}]
L_g2:
global_load_dwordx2 v[2:3], v15, s[96:97] sc1
global_load_dwordx4 v[8:11], v14, s[96:97] sc1
s_waitcnt vmcnt(0)""")
    untag(2, 2); untag(8)
    tagcheck([2, 3, 8, 9, 10, 11], 1, "L_g2", True)
    stamp(11)
    def red8(op, v, t):
        a(f"{op}_dpp v{v}, v{v}, v{v} row_ror:8 {FULL}")
        for p in ("16", "32"):
            a(f"v_mov_b32 v{t}, v{v}\nv_permlane{p}_swap_b32 v{t}, v{v}\n{op} v{v}, v{v}, v{t}")
    a("v_mov_b32 v1, v2")
    red8("v_max_f32", 1, 19)
    a("v_sub_f32 v2, v2, v1\nv_mul_f32 v2, 0x3fb8aa3b, v2\nv_exp_f32 v2, v2")
    a("v_mul_f32 v3, v3, v2")
    for r in range(4): a(f"v_mul_f32 v{8+r}, v{8+r}, v2")
    red8("v_add_f32", 3, 19)
    redscat(8)
    a(f"v_rcp_f32 v3, v3\nv_add_f32_dpp v8, v8, v8 row_ror:8 {FULL}\nv_mul_f32 v8, v8, v3\nv_cvt_pk_bf16_f32 v8, v8, v8")
    for i in range(8):
        for t in range(4): a(f"v_and_b32_dpp v{A+4*i+t}, v8, v{ML+t} row_newbcast:{i} {FULL}")
        if i: a(f"v_mfma_f32_16x16x32_bf16 {q(DD)}, {q(A+4*i-4)}, {q(WO+4*i-4)}, {q(DD)}")
    a(f"v_mfma_f32_16x16x32_bf16 {q(DD)}, {q(A+28)}, {q(WO+28)}, {q(DD)}")
    a(f"ds_write_b128 v17, {q(DD)} offset:{LY}\ns_waitcnt lgkmcnt(0)\ns_barrier")
    stamp(12)
    a(f"""s_cmp_eq_u32 s{sW}, 0
s_cbranch_scc0 L_notpub""")
    for k in range(4): a(f"ds_read_b128 {q(20+4*k)}, v16 offset:{LY+1024*k}")
    a("s_waitcnt lgkmcnt(2)")
    for r in range(4): a(f"v_add_f32 v{20+r}, v{20+r}, v{24+r}")
    a("s_waitcnt lgkmcnt(0)")
    for r in range(4): a(f"v_add_f32 v{28+r}, v{28+r}, v{32+r}")
    for r in range(4): a(f"v_add_f32 v{20+r}, v{20+r}, v{28+r}")
    tag(20)
    a(f"""s_mov_b64 exec, s[56:57]
global_store_dwordx4 v18, v[20:23], s[{sM3}:{sM3+1}] sc1
s_mov_b64 exec, -1
s_branch L_done
L_notpub:
s_cmp_eq_u32 s{sW}, 1
s_cbranch_scc0 L_done
s_cmp_ge_u32 s{sH}, 27
s_cbranch_scc0 L_done
s_sub_u32 s{sT0}, s{sH}, 27
s_lshl_b32 s{sT0}, s{sT0}, 3
s_add_u32 s{sT0}, s{sT0}, s{sS}
s_lshl_b32 s{sT1}, s{sT0}, 12
v_add_u32 v16, s{sT1}, v16
v_and_b32 v1, 3, v0
v_lshrrev_b32 v2, 4, v0
v_lshl_add_u32 v1, v1, 2, v2
s_lshl_b32 s{sT0}, s{sT0}, 4
v_add_lshl_u32 v1, v1, s{sT0}, 1
global_load_ushort v2, v1, s[4:5]
L_g3:""")
    for k in range(4): a(f"global_load_dwordx4 {q(20+4*k)}, v16, s[{sM3}:{sM3+1}] offset:{1024*k} sc1")
    for k in range(4):
        a(f"s_waitcnt vmcnt({3-k})"); untag(20+4*k)
    tagcheck(range(20, 36), 3, "L_g3")
    stamp(13)
    for r in range(4): a(f"v_add_f32 v{20+r}, v{20+r}, v{24+r}")
    for r in range(4): a(f"v_add_f32 v{28+r}, v{28+r}, v{32+r}")
    for r in range(4): a(f"v_add_f32 v{20+r}, v{20+r}, v{28+r}")
    redscat(20)
    a(f"v_lshlrev_b32 v2, 16, v2\nv_add_f32_dpp v20, v20, v20 row_ror:8 {FULL}")
    rbf(20, 20)
    a("v_add_f32 v2, v2, v20")
    rbf(2, 2)
    a(f"""v_add_f32_dpp v2, v20, v2 row_shl:4 {FULL}
s_mov_b32 s56, 0x000f000f
s_mov_b32 s57, 0x000f000f
v_cvt_pk_bf16_f32 v2, v2, v2
s_mov_b64 exec, s[56:57]
global_store_short v1, v2, s[22:23]
s_cmp_eq_u32 s2, 27
s_cbranch_scc0 L_nobump
s_mov_b64 exec, 1
v_mov_b32 v1, 0xc0000
v_mov_b32 v2, s{sE}
global_store_dword v1, v2, s[26:27] sc1
L_nobump:
s_mov_b64 exec, -1
s_branch L_done""")
    KR, VR, S, Q = 16, 80, 144, 8
    a("L_main:")
    a(f"""s_sub_u32 s{sW}, s{sW}, 4
s_lshl_b32 s{sT0}, s{sW}, 12
v_lshl_add_u32 v1, v0, 4, s{sT0}
s_lshl_b32 s{sT0}, s{sH}, 21
s_lshl_b32 s{sT1}, s{sS}, 16
s_add_u32 s{sT0}, s{sT0}, s{sT1}
s_add_u32 s{sT0}, s{sT0}, 0x180000
s_mov_b32 s30, 0x10000
s_mov_b32 s34, 0x10000""")
    if rot:
        a(f"s_lshr_b32 s{sT1}, s2, 3\ns_add_u32 s{sT1}, s{sT1}, s2\ns_lshl_b32 s{sT1}, s{sT1}, 14")
    else:
        a(f"s_mov_b32 s{sT1}, 0")
    for t in range(4):
        a(f"s_and_b32 s{36+t}, s{sT1}, 0xc000")
        if t < 3: a(f"s_add_u32 s{sT1}, s{sT1}, 0x4000")
    a(f"""s_waitcnt lgkmcnt(0)
s_add_u32 s28, s6, s{sT0}
s_addc_u32 s29, s7, 0
s_add_u32 s32, s8, s{sT0}
s_addc_u32 s33, s9, 0""")
    stamp(1)
    def ld(n):
        i = n & 15
        base, srd = (KR, "s[28:31]") if n < 16 else (VR, "s[32:35]")
        a(f"buffer_load_dwordx4 {q(base+4*i)}, v1, {srd}, s{36+(i>>2)} offen offset:{1024*(i&3)}{nt}")
    for n in range(D0): ld(n)
    epoch_load(); groupptr()
    masks()
    epoch_tags()
    a(f"v_and_b32 v2, 15, v0\nv_lshlrev_b32 v12, 4, v2")
    a("s_mov_b32 s54, 0xcccccccc\ns_mov_b32 s55, 0xcccccccc\ns_mov_b32 s56, 0xaaaaaaaa\ns_mov_b32 s57, 0xaaaaaaaa")
    if D0 < D: a(f"s_waitcnt vmcnt({D0-1})")
    for n in range(D0, 16 + NV1):
        if n >= D: a(f"s_waitcnt vmcnt({D-1})")
        ld(n)
        if n == 15: stamp(2)
    stamp(3)
    a("s_barrier")
    stamp(4)
    a(f"ds_read_b128 {q(Q)}, v12 offset:{LQ}")
    a(f"s_waitcnt vmcnt({min(NV1, 63)}) lgkmcnt(0)")
    nxt = 16 + NV1
    for i0 in range(0, 16, 4):
        for r in range(4):
            for i in range(i0, i0 + 4):
                a(f"v_dot2_f32_bf16 v{S+i}, v{KR+4*i+r}, v{Q+r}, {'0' if r == 0 else 'v%d' % (S+i)}")
            if r == 3 or r == 1:
                if nxt < 32: ld(nxt); nxt += 1
    for i in range(8):
        a(f"v_add_f32_dpp v{S+i}, v{S+i}, v{S+i} row_ror:8 row_mask:0xf bank_mask:0x3")
    for i in range(8):
        a(f"v_add_f32_dpp v{S+i}, v{S+i+8}, v{S+i+8} row_ror:8 row_mask:0xf bank_mask:0xc")
    for i in range(4):
        a(f"v_add_f32_dpp v{S+i}, v{S+i}, v{S+i} row_shl:4 row_mask:0xf bank_mask:0x5")
    for i in range(4):
        a(f"v_add_f32_dpp v{S+i}, v{S+i+4}, v{S+i+4} row_shr:4 row_mask:0xf bank_mask:0xa")
    while nxt < 32: ld(nxt); nxt += 1
    for i in range(4):
        a(f"v_add_f32_dpp v{S+i}, v{S+i}, v{S+i} quad_perm:[2,3,0,1] {FULL}")
    a(f"v_cndmask_b32 v{S}, v{S}, v{S+2}, s[54:55]\nv_cndmask_b32 v{S+1}, v{S+1}, v{S+3}, s[54:55]")
    for i in range(2):
        a(f"v_add_f32_dpp v{S+i}, v{S+i}, v{S+i} quad_perm:[1,0,3,2] {FULL}")
    a(f"v_cndmask_b32 v{S}, v{S}, v{S+1}, s[56:57]")
    rbf(S, S)
    a(f"v_mul_f32 v{S}, 0x3db504f3, v{S}")
    rbf(S, S)
    a(f"v_mov_b32 v2, v{S}")
    allred("v_max_f32", 2, 3)
    a(f"""s_lshl_b32 s{sT0}, s{sW}, 2
v_mov_b32 v13, s{sT0}
v_mov_b32 v14, 0
ds_write_b32 v13, v2 offset:{LMX}
s_waitcnt lgkmcnt(0)""")
    stamp(5)
    a(f"""s_barrier
ds_read_b128 v[8:11], v14 offset:{LMX}
v_and_b32 v3, 15, v0
v_lshlrev_b32 v3, 5, v3
v_and_b32 v12, 16, v0
v_add_u32 v12, v3, v12
s_lshl_b32 s{sT0}, s{sW}, 9
v_add_u32 v15, s{sT0}, v12
s_waitcnt lgkmcnt(0)
v_max3_f32 v2, v8, v9, v10
v_max_f32 v2, v2, v11
v_sub_f32 v{S}, v{S}, v2
v_mul_f32 v{S}, 0x3fb8aa3b, v{S}
v_exp_f32 v3, v{S}
v_cvt_pk_bf16_f32 v{S}, v3, v3""")
    allred("v_add_f32", 3, S+1)
    a(f"ds_write_b32 v13, v3 offset:{LL}")
    for i in range(16):
        for t in range(4): a(f"v_and_b32_dpp v{KR+4*i+t}, v{S}, v{M+t} row_newbcast:{i} {FULL}")
    stamp(6)
    for i in range(16):
        a(f"s_waitcnt vmcnt({15-i})\nv_mfma_f32_16x16x32_bf16 {q(S+4)}, {q(KR+4*i)}, {q(VR+4*i)}, {'0' if i == 0 else q(S+4)}")
    stamp(7)
    a(f"""s_mov_b32 exec_hi, 0
ds_write_b128 v15, {q(S+4)} offset:{LO}
s_waitcnt lgkmcnt(0)
s_barrier""")
    stamp(8)
    a(f"""s_cmp_eq_u32 s{sW}, 0
s_cbranch_scc0 L_mdone
v_lshlrev_b32 v12, 4, v0""")
    for k in range(4): a(f"ds_read_b128 {q(16+4*k)}, v12 offset:{LO+512*k}")
    a(f"""ds_read_b128 v[8:11], v14 offset:{LL}
v_lshrrev_b32 v13, 3, v0
v_lshlrev_b32 v13, 10, v13
v_and_b32 v12, 0x70, v12
v_add_u32 v13, v13, v12
s_lshl_b32 s{sT0}, s{sS}, 7
s_add_u32 s{sT0}, s{sT0}, 8192
v_add_u32 v13, s{sT0}, v13
s_add_u32 s{sT0}, s{sT0}, 4096
v_mov_b32 v14, s{sT0}
s_waitcnt lgkmcnt(3)""")
    for r in range(4): a(f"v_add_f32 v{16+r}, v{16+r}, v{20+r}")
    a("s_waitcnt lgkmcnt(1)")
    for r in range(4): a(f"v_add_f32 v{24+r}, v{24+r}, v{28+r}")
    for r in range(4): a(f"v_add_f32 v{16+r}, v{16+r}, v{24+r}")
    tag(16)
    a(f"""global_store_dwordx4 v13, v[16:19], s[{sG}:{sG+1}]
s_waitcnt lgkmcnt(0)
v_add_f32 v8, v8, v9
v_add_f32 v10, v10, v11
v_add_f32 v3, v8, v10""")
    tag(2, 2)
    a(f"""s_mov_b64 exec, 1
global_store_dwordx2 v14, v[2:3], s[{sG}:{sG+1}]""")
    if dual:
        a("global_store_dwordx2 v14, v[2:3], s[62:63] sc1\ns_mov_b32 exec_lo, -1\nglobal_store_dwordx4 v13, v[16:19], s[62:63] sc1")
    stamp(9)
    a(f"L_mdone:\ns_mov_b64 exec, -1")
    if stamps: a(f"s_add_u32 s{sW}, s{sW}, 4")
    a("L_done:")
    if stamps:
        a("s_waitcnt vmcnt(0)")
        stamp(14)
        a("s_waitcnt lgkmcnt(0)\nv_mov_b32 v4, 0")
        for n in range(15): a(f"v_writelane_b32 v4, s{64+2*n}, {n}")
        a(f"v_writelane_b32 v4, s{sCnt}, 15")
        a(f"""s_lshl_b32 s{sT0}, s2, 3
s_add_u32 s{sT0}, s{sT0}, s{sW}
s_lshl_b32 s{sT0}, s{sT0}, 8
s_add_u32 s{sT0}, s{sT0}, 0x1000000
v_lshl_add_u32 v5, v0, 2, s{sT0}
global_store_dword v5, v4, s[26:27]""")
        if dbgwave is not None:
            a(f"""s_lshl_b32 s{sT0}, s2, 3
s_add_u32 s{sT0}, s{sT0}, s{sW}
s_cmp_eq_u32 s{sT0}, {dbgwave}
s_cbranch_scc0 L_end
v_subrev_u32 v4, s64, v4
v_lshlrev_b32 v5, 2, v0
s_mov_b64 exec, 0x7fff
global_store_dword v5, v4, s[24:25]""")
    a("L_end:\ns_endpgm")
    o.append(f""".section .rodata,"a"
.p2align 6
.amdhsa_kernel {KN}
  .amdhsa_next_free_vgpr 160
  .amdhsa_next_free_sgpr 102
  .amdhsa_accum_offset 160
  .amdhsa_group_segment_fixed_size 0
  .amdhsa_kernarg_size 96
  .amdhsa_user_sgpr_count 2
  .amdhsa_user_sgpr_kernarg_segment_ptr 1
  .amdhsa_system_sgpr_workgroup_id_x 1
  .amdhsa_float_denorm_mode_32 3
.end_amdhsa_kernel""")
    txt = "\n".join(o)
    if stamps:
        import re
        txt = re.sub(r"lgkmcnt\(\d+\)", "lgkmcnt(0)", txt)
    return pad(txt) + "\n"
if __name__ == "__main__":
    kw = eval("dict(" + (sys.argv[2] if len(sys.argv) > 2 else "") + ")")
    open(sys.argv[1], "w").write(gen(**kw))
ROLES = {"front": slice(0, 4), "main": slice(4, 8)}
```

```python
import sys
from asmlib import pad
KN = "parallel_sum__sliding_block_cached__glu_gated_glu__decode_kernel"
FULL = "row_mask:0xf bank_mask:0xf"
def q(r, n=4): return f"v[{r}:{r+n-1}]"

def gen(stamps=False, D=6, D0=2, NV1=8, nt=" nt", rot=True, dual=True, alt=31, diag=0, g1wait=0, g2wait=12, prefetch=0, spin=100000, dbgwave=None):
    o = []
    def a(s):
        for l in s.split("\n"): o.append("    " + l.strip() if not l.strip().endswith(":") else l.strip())
    nst = [0]
    def stamp(k):
        if stamps: a(f"s_memrealtime s[{64+2*k}:{65+2*k}]")
    def allred(op, v, t):
        for m in ("quad_perm:[1,0,3,2]", "quad_perm:[2,3,0,1]", "row_half_mirror", "row_mirror"):
            a(f"{op}_dpp v{v}, v{v}, v{v} {m} {FULL}")
        for p in ("16", "32"):
            a(f"v_mov_b32 v{t}, v{v}\nv_permlane{p}_swap_b32 v{t}, v{v}\n{op} v{v}, v{v}, v{t}")
    def redscat(r):
        a(f"v_permlane32_swap_b32 v{r}, v{r+2}\nv_permlane32_swap_b32 v{r+1}, v{r+3}")
        a(f"v_add_f32 v{r}, v{r}, v{r+2}\nv_add_f32 v{r+1}, v{r+1}, v{r+3}")
        a(f"v_permlane16_swap_b32 v{r}, v{r+1}\nv_add_f32 v{r}, v{r}, v{r+1}")
    def rbf(d, s):
        a(f"v_cvt_pk_bf16_f32 v{d}, v{s}, v{s}\nv_and_b32 v{d}, 0xffff0000, v{d}")
    sH, sS, sW, sCnt, sT0, sT1, sT2 = 40, 41, 3, 42, 43, 44, 45
    sG = 46
    sM3 = 48
    sRS = 50
    sE, sTg = 51, 58
    def epoch_load(): a(f"s_load_dword s{sE}, s[26:27], 0xc0000")
    def epoch_tags():
        a(f"s_waitcnt lgkmcnt(0)\ns_add_u32 s{sE}, s{sE}, 0x41041")
        for r in range(4): a(f"s_bfe_u32 s{sTg+r}, s{sE}, {0x60000 + 6*r}")
    def tag(r0, n=4):
        for r in range(n): a(f"v_bfi_b32 v{r0+r}, 63, s{sTg+r}, v{r0+r}")
    def untag(r0, n=4):
        for r in range(n): a(f"v_xor_b32 v{r0+r}, s{sTg+r}, v{r0+r}")
    def gstore(op, va, data):
        a(f"{op} {va}, {data}, s[{sG}:{sG+1}]")
        if dual: a(f"{op} {va}, {data}, s[62:63] sc1")
    def tagcheck(regs, t, lab, alt_=False, full=()):
        regs = list(regs)
        a(f"v_or3_b32 v{t}, v{regs[0]}, v{regs[1]}, v{regs[2]}"); regs = regs[3:]
        while len(regs) >= 2:
            a(f"v_or3_b32 v{t}, v{t}, v{regs[0]}, v{regs[1]}"); regs = regs[2:]
        if regs: a(f"v_or_b32 v{t}, v{t}, v{regs[0]}")
        a(f"v_and_b32 v{t}, 63, v{t}")
        if full: a(f"v_or3_b32 v{t}, v{t}, v{full[0]}, v{full[1]}")
        a(f"""v_cmp_ne_u32 vcc, 0, v{t}
s_cbranch_vccz {lab}_ok
s_sub_i32 s{sCnt}, s{sCnt}, 1""")
        if alt_ and dual:
            a(f"""s_add_u32 s98, s98, 1
s_and_b32 s99, s98, {alt}
s_cselect_b64 s[96:97], s[{sG}:{sG+1}], s[62:63]""")
        a(f"""s_cmp_gt_i32 s{sCnt}, 0
s_cbranch_scc1 {lab}
{lab}_ok:""")
    LQ, LH, LMX, LL, LO, LY = 0, 256, 512, 528, 1024, 3072
    M = 4
    hdr = open("cdna_kernels/" + KN[:-7] + ".s.ref").read().split("; Override")[0]
    o.append(hdr.rstrip())
    o.append("; @launch grid=(256,1,1) block=(512,1,1) lds=8192")
    o.append('.amdgcn_target "amdgcn-amd-amdhsa--gfx950"\n.text')
    o.append(f".globl {KN}\n.p2align 8\n.type {KN},@function\n{KN}:")
    if stamps:
        for k in range(1, 15): a(f"s_mov_b32 s{64+2*k}, 0")
    stamp(0)
    if diag: a("s_memrealtime s[94:95]")
    a(f"""s_load_dwordx16 s[4:19], s[0:1], 0
s_load_dwordx8 s[20:27], s[0:1], 64
s_cmp_ge_u32 s2, 256
s_cbranch_scc1 L_end
v_lshrrev_b32 v1, 6, v0
v_and_b32 v0, 63, v0
s_and_b32 s{sH}, s2, 31
v_readfirstlane_b32 s{sW}, v1
s_lshr_b32 s{sS}, s2, 5
s_mov_b32 s31, 0x20000
s_mov_b32 s35, 0x20000
s_mov_b32 s{sCnt}, {spin}
s_cmp_ge_u32 s{sW}, 4
s_cbranch_scc1 L_main""")
    def masks():
        a(f"""v_and_b32 v2, 1, v0
v_lshlrev_b32 v2, 4, v2
v_mov_b32 v3, 0xffff
v_lshlrev_b32 v2, v2, v3
v_bfe_u32 v3, v0, 1, 2""")
        for t in range(4):
            a(f"v_cmp_eq_u32 vcc, {t}, v3\nv_cndmask_b32 v{M+t}, 0, v2, vcc")
    def groupptr():
        a(f"""s_lshl_b32 s{sT0}, s{sH}, 14
s_add_u32 s{sG}, s26, s{sT0}
s_addc_u32 s{sG+1}, s27, 0
s_add_u32 s62, s{sG}, 0x100000
s_addc_u32 s63, s{sG+1}, 0
s_mov_b64 s[96:97], s[{sG}:{sG+1}]
s_add_u32 s{sM3}, s26, 0x80000
s_addc_u32 s{sM3+1}, s27, 0""")
    XA, XB, W, A, T, DD = 8, 14, 20, 68, 108, 124
    a(f"""s_cmp_lt_u32 s{sW}, 2
s_movk_i32 s{sRS}, 3456
s_cselect_b32 s{sRS}, 8192, s{sRS}
v_lshrrev_b32 v1, 3, v0
v_mul_u32_u24 v1, 10, v1
s_mul_i32 s{sT0}, s{sS}, 80
v_add_u32 v1, s{sT0}, v1
v_mul_u32_u24 v2, 20, v0
v_lshlrev_b32 v3, 1, v1
v_mul_u32_u24 v1, s{sRS}, v1
v_and_b32 v19, 7, v0
v_lshl_add_u32 v1, v19, 4, v1
s_lshl_b32 s{sT0}, s{sH}, 8
s_lshl_b32 s{sT1}, s{sW}, 7
s_add_u32 s{sT0}, s{sT0}, s{sT1}
s_lshl_b32 s{sT1}, s{sH}, 7
s_sub_u32 s30, 2211840, s{sT1}
s_cmp_lt_u32 s{sH}, 27
s_cselect_b32 s30, s30, 0
s_sub_u32 s{sT2}, 5242880, s{sT0}
s_cmp_lt_u32 s{sW}, 2
s_cselect_b32 s30, s{sT2}, s30
s_cselect_b32 s{sT0}, s{sT0}, s{sT1}
s_waitcnt lgkmcnt(0)
global_load_dwordx4 {q(XA)}, v2, s[4:5]
global_load_dword v{XA+4}, v2, s[4:5] offset:16
global_load_dwordx4 {q(XB)}, v3, s[4:5]
global_load_dword v{XB+4}, v3, s[4:5] offset:16
s_cselect_b32 s28, s10, s16
s_cselect_b32 s29, s11, s17
s_cmp_eq_u32 s{sW}, 3
s_cselect_b32 s28, s18, s28
s_cselect_b32 s29, s19, s29
s_add_u32 s28, s28, s{sT0}
s_addc_u32 s29, s29, 0
s_mov_b32 s{sT1}, 0""")
    for i in range(10):
        a(f"buffer_load_dwordx4 {q(W+4*i)}, v1, s[28:31], s{sT1} offen{nt}")
        if i < 9: a(f"s_add_u32 s{sT1}, s{sT1}, s{sRS}")
    npf = 0
    if prefetch:
        a(f"""s_getpc_b64 s[52:53]
s_and_b32 s52, s52, 0xffffff00
v_lshlrev_b32 v2, 7, v0
v_min_u32 v2, {prefetch}, v2
global_load_dword v13, v2, s[52:53]""")
        npf = 1
    epoch_load()
    stamp(1)
    masks(); groupptr()
    a(f"s_waitcnt vmcnt({12+npf})")
    stamp(2)
    for i in range(5):
        a(f"v_lshlrev_b32 v{T+2*i}, 16, v{XA+i}\nv_and_b32 v{T+2*i+1}, 0xffff0000, v{XA+i}")
    a(f"v_add_f32 v2, v{T}, v{T+1}\nv_add_f32 v3, v{T+2}, v{T+3}")
    for i in range(2, 5):
        a(f"v_add_f32 v2, v2, v{T+2*i}\nv_add_f32 v3, v3, v{T+2*i+1}")
    a("v_add_f32 v2, v2, v3")
    allred("v_add_f32", 2, 3)
    a("v_mul_f32 v2, 0x3acccccd, v2")
    for i in range(10): a(f"v_sub_f32 v{T+i}, v{T+i}, v2")
    a(f"v_mul_f32 v3, v{T}, v{T}\nv_mul_f32 v19, v{T+1}, v{T+1}")
    for i in range(1, 5):
        a(f"v_fmac_f32 v3, v{T+2*i}, v{T+2*i}\nv_fmac_f32 v19, v{T+2*i+1}, v{T+2*i+1}")
    a("v_add_f32 v3, v3, v19")
    allred("v_add_f32", 3, 19)
    a("v_mul_f32 v3, 0x3acccccd, v3")
    rbf(2, 2); rbf(3, 3)
    a("v_add_f32 v3, 0x3727c5ac, v3")
    rbf(3, 3)
    a("v_sqrt_f32 v3, v3")
    rbf(3, 3)
    a(f"v_rcp_f32 v3, v3\ns_waitcnt vmcnt({10+npf})")
    for i in range(5):
        a(f"v_lshlrev_b32 v{T+2*i}, 16, v{XB+i}\nv_and_b32 v{T+2*i+1}, 0xffff0000, v{XB+i}")
    for i in range(10): a(f"v_sub_f32 v{T+i}, v{T+i}, v2")
    for i in range(5): a(f"v_cvt_pk_bf16_f32 v{XB+i}, v{T+2*i}, v{T+2*i+1}")
    for i in range(5):
        a(f"v_lshlrev_b32 v{T+2*i}, 16, v{XB+i}\nv_and_b32 v{T+2*i+1}, 0xffff0000, v{XB+i}")
    for i in range(10): a(f"v_mul_f32 v{T+i}, v{T+i}, v3")
    for i in range(10): a(f"v_cvt_pk_bf16_f32 v{T+i}, v{T+i}, v{T+i}")
    for i in range(10):
        for t in range(4): a(f"v_and_b32 v{A+4*i+t}, v{T+i}, v{M+t}")
    stamp(3)
    epoch_tags()
    for i in range(10):
        a(f"s_waitcnt vmcnt({9-i+npf})")
        a(f"v_mfma_f32_16x16x32_bf16 {q(DD)}, {q(A+4*i)}, {q(W+4*i)}, {'0' if i == 0 else q(DD)}")
    stamp(4)
    a(f"""v_and_b32 v1, 7, v0
v_lshlrev_b32 v1, 5, v1
v_and_b32 v2, 16, v0
v_add_u32 v1, v1, v2
s_lshl_b32 s{sT0}, s{sS}, 10
s_lshl_b32 s{sT1}, s{sW}, 8
s_add_u32 s{sT0}, s{sT0}, s{sT1}
v_add_u32 v1, s{sT0}, v1""")
    a(f"""v_permlane32_swap_b32 v{DD}, v{DD+2}
v_permlane32_swap_b32 v{DD+1}, v{DD+3}
v_add_f32_dpp v{DD}, v{DD+2}, v{DD} row_ror:8 {FULL}
v_add_f32_dpp v{DD+1}, v{DD+3}, v{DD+1} row_ror:8 {FULL}
v_permlane32_swap_b32 v{DD}, v{DD+2}
v_permlane32_swap_b32 v{DD+1}, v{DD+3}""")
    tag(DD)
    a("s_mov_b64 exec, 0x00ff00ff")
    gstore("global_store_dwordx4", "v1", q(DD))
    a("s_mov_b64 exec, -1")
    stamp(5)
    a(f"""v_and_b32 v2, 15, v0
v_lshlrev_b32 v2, 4, v2
v_and_b32 v3, 8, v0
v_lshl_add_u32 v3, v3, 4, v2
s_lshl_b32 s{sT0}, s{sW}, 7
s_add_u32 s{sT0}, s{sT0}, 256
s_cmp_lt_u32 s{sW}, 2
s_cselect_b64 vcc, -1, 0
s_cselect_b32 s{sT0}, s{sT1}, s{sT0}
v_cndmask_b32 v2, v3, v2, vcc
v_lshrrev_b32 v3, 4, v0
v_lshl_add_u32 v2, v3, 10, v2
v_add_u32 v2, s{sT0}, v2
v_add_u32 v10, 0x1000, v2
s_mov_b32 s54, 0x00ff00ff
s_mov_b32 s55, 0x00ff00ff""")
    if g1wait: a("s_waitcnt vmcnt(0)")
    a(f"""s_mov_b32 s98, 0
L_g1:
global_load_dwordx4 {q(W)}, v2, s[96:97] sc1
global_load_dwordx4 {q(W+4)}, v10, s[96:97] sc1
s_waitcnt vmcnt(0)""")
    untag(W); untag(W+4)
    tagcheck(range(W, W+8), 3, "L_g1", True)
    stamp(6)
    for r in range(4): a(f"v_add_f32 v{W+r}, v{W+r}, v{W+4+r}")
    redscat(W)
    a(f"""v_cvt_pk_bf16_f32 v{W}, v{W}, v{W}
v_and_b32 v2, 15, v0
v_lshrrev_b32 v3, 4, v0
v_lshl_add_u32 v2, v2, 2, v3
s_cmp_lt_u32 s{sW}, 2
s_cbranch_scc0 L_glu
s_lshl_b32 s{sT0}, s{sW}, 6
v_add_lshl_u32 v2, v2, s{sT0}, 1
ds_write_b16 v2, v{W} offset:{LQ}
s_branch L_b1
L_glu:
v_and_b32 v{W}, 0xffff0000, v{W}
v_mul_f32 v3, 0xbfb8aa3b, v{W}
v_exp_f32 v3, v3
s_lshl_b32 s{sT0}, s{sW}, 5
v_add_f32 v3, 1.0, v3
v_rcp_f32 v3, v3
s_sub_u32 s{sT0}, s{sT0}, 64""")
    rbf(3, 3)
    a(f"""v_mul_f32_dpp v3, v{W}, v3 row_ror:8 {FULL}
v_add_lshl_u32 v2, v2, s{sT0}, 2
v_cvt_pk_bf16_f32 v3, v3, v3
s_mov_b64 exec, s[54:55]
ds_write_b32 v2, v3 offset:{LH}
s_mov_b64 exec, -1
L_b1:
s_waitcnt lgkmcnt(0)
s_barrier""")
    stamp(7)
    WD, WO, AF, ML = 20, 36, 100, 116
    a(f"""v_lshrrev_b32 v3, 4, v0
s_lshl_b32 s{sT0}, s{sW}, 6
v_lshl_add_u32 v2, v3, 4, s{sT0}
ds_read_b128 v[8:11], v2 offset:{LH}
s_mul_i32 s{sT0}, s{sH}, {128*1280}
s_mul_i32 s{sT1}, s{sS}, 160
s_add_u32 s{sT0}, s{sT0}, s{sT1}
s_add_u32 s28, s12, s{sT0}
s_addc_u32 s29, s13, 0
s_sub_u32 s30, 5242880, s{sT0}
s_mul_i32 s{sT0}, s{sH}, {64*1280}
s_add_u32 s{sT0}, s{sT0}, s{sT1}
s_add_u32 s32, s20, s{sT0}
s_addc_u32 s33, s21, 0
s_sub_u32 s34, 2211840, s{sT0}
s_cmp_lt_u32 s{sH}, 27
s_cselect_b32 s34, s34, 0
v_and_b32 v2, 15, v0
v_cmp_gt_u32 vcc, 10, v2
v_lshlrev_b32 v2, 4, v2
v_mov_b32 v12, 0x40000000
v_cndmask_b32 v2, v12, v2, vcc
s_mul_i32 s{sT0}, s{sW}, {32*1280}
s_movk_i32 s{sT1}, 1280
v_mad_u32_u24 v12, v3, s{sT1}, v2
v_add_u32 v12, s{sT0}, v12
s_movk_i32 s{sT1}, 5120
v_mad_u32_u24 v13, v3, s{sT1}, v2
s_mul_i32 s{sT0}, s{sW}, {16*1280}
v_add_u32 v13, s{sT0}, v13""")
    for t in range(4): a(f"v_cndmask_b32 v{ML+t}, 0, v{M+t}, s[54:55]")
    for t in range(4): a(f"v_cndmask_b32 v{M+t}, v{M+t}, 0, s[54:55]")
    a(f"""s_lshl_b32 s{sT0}, s{sW}, 10
s_add_u32 s{sT0}, s{sT0}, 8192
v_lshl_add_u32 v14, v0, 4, s{sT0}
v_and_b32 v15, 56, v0
v_lshlrev_b32 v15, 4, v15
v_add_u32 v15, 12288, v15
s_waitcnt lgkmcnt(0)""")
    for i in range(4):
        for t in range(4): a(f"v_and_b32 v{AF+4*i+t}, v{8+i}, v{M+t}")
    a("s_barrier")
    stamp(8)
    for i in range(4):
        a(f"buffer_load_dwordx4 {q(WD+4*i)}, v13, s[32:35], 0 offen offset:{1280*i}{nt}")
    a(f"s_mov_b32 s{sT0}, 0")
    for i in range(8):
        a(f"buffer_load_dwordx4 {q(WO+4*i)}, v12, s[28:31], s{sT0} offen{nt}")
        if i < 7: a(f"s_add_u32 s{sT0}, s{sT0}, 5120")
    stamp(9)
    a(f"""s_lshl_b32 s{sT0}, s{sW}, 10
v_lshlrev_b32 v16, 4, v0
v_add_u32 v17, s{sT0}, v16
v_and_b32 v1, 15, v0
v_lshrrev_b32 v2, 1, v1
v_lshlrev_b32 v2, 12, v2
v_and_b32 v3, 1, v1
v_lshl_add_u32 v2, v3, 5, v2
v_and_b32 v3, 16, v0
v_add_u32 v2, v2, v3
v_and_b32 v3, 32, v0
v_lshl_add_u32 v2, v3, 1, v2
s_mul_i32 s{sT0}, s{sS}, 20480
s_lshl_b32 s{sT1}, s{sH}, 7
s_add_u32 s{sT0}, s{sT0}, s{sT1}
v_add_u32 v18, s{sT0}, v2
s_mov_b32 s56, 0x03ff03ff
s_mov_b32 s57, 0x03ff03ff
s_barrier""")
    stamp(10)
    for i in range(4):
        a(f"s_waitcnt vmcnt({11-i})\nv_mfma_f32_16x16x32_bf16 {q(DD)}, {q(AF+4*i)}, {q(WD+4*i)}, {'0' if i == 0 else q(DD)}")
    if g2wait < 8: a(f"s_waitcnt vmcnt({g2wait})")
    a(f"""s_mov_b32 s98, 0
s_mov_b64 s[96:97], s[{sG}:{sG+1}]
L_g2:
global_load_dwordx4 v[120:123], v15, s[96:97] sc1
global_load_dwordx4 v[8:11], v14, s[96:97] sc1
s_waitcnt vmcnt(0)""")
    a(f"v_xor_b32 v2, s{sTg}, v120\nv_xor_b32 v3, s{sTg+1}, v121\nv_xor_b32 v122, s{sE}, v122\nv_xor_b32 v123, s{sE}, v123")
    untag(8)
    tagcheck([2, 3, 8, 9, 10, 11], 1, "L_g2", True, (122, 123))
    stamp(11)
    def red8(op, v, t):
        a(f"{op}_dpp v{v}, v{v}, v{v} row_ror:8 {FULL}")
        for p in ("16", "32"):
            a(f"v_mov_b32 v{t}, v{v}\nv_permlane{p}_swap_b32 v{t}, v{v}\n{op} v{v}, v{v}, v{t}")
    a("v_mov_b32 v1, v2")
    red8("v_max_f32", 1, 19)
    a("v_sub_f32 v2, v2, v1\nv_mul_f32 v2, 0x3fb8aa3b, v2\nv_exp_f32 v2, v2")
    a("v_mul_f32 v3, v3, v2")
    for r in range(4): a(f"v_mul_f32 v{8+r}, v{8+r}, v2")
    red8("v_add_f32", 3, 19)
    redscat(8)
    a(f"v_rcp_f32 v3, v3\nv_add_f32_dpp v8, v8, v8 row_ror:8 {FULL}\nv_mul_f32 v8, v8, v3\nv_cvt_pk_bf16_f32 v8, v8, v8")
    for i in range(8):
        for t in range(4): a(f"v_and_b32_dpp v{A+4*i+t}, v8, v{ML+t} row_newbcast:{i} {FULL}")
        if i: a(f"v_mfma_f32_16x16x32_bf16 {q(DD)}, {q(A+4*i-4)}, {q(WO+4*i-4)}, {q(DD)}")
    a(f"v_mfma_f32_16x16x32_bf16 {q(DD)}, {q(A+28)}, {q(WO+28)}, {q(DD)}")
    a(f"ds_write_b128 v17, {q(DD)} offset:{LY}\ns_waitcnt lgkmcnt(0)\ns_barrier")
    stamp(12)
    a(f"""s_cmp_eq_u32 s{sW}, 0
s_cbranch_scc0 L_notpub""")
    for k in range(4): a(f"ds_read_b128 {q(20+4*k)}, v16 offset:{LY+1024*k}")
    a("s_waitcnt lgkmcnt(2)")
    for r in range(4): a(f"v_add_f32 v{20+r}, v{20+r}, v{24+r}")
    a("s_waitcnt lgkmcnt(0)")
    for r in range(4): a(f"v_add_f32 v{28+r}, v{28+r}, v{32+r}")
    for r in range(4): a(f"v_add_f32 v{20+r}, v{20+r}, v{28+r}")
    tag(20)
    a(f"""s_mov_b64 exec, s[56:57]
global_store_dwordx4 v18, v[20:23], s[{sM3}:{sM3+1}] sc1
s_mov_b64 exec, -1
s_branch L_done
L_notpub:
s_cmp_eq_u32 s{sW}, 1
s_cbranch_scc0 L_done
s_cmp_ge_u32 s{sH}, 27
s_cbranch_scc0 L_done
s_sub_u32 s{sT0}, s{sH}, 27
s_lshl_b32 s{sT0}, s{sT0}, 3
s_add_u32 s{sT0}, s{sT0}, s{sS}
s_lshl_b32 s{sT1}, s{sT0}, 12
v_add_u32 v16, s{sT1}, v16
v_and_b32 v1, 3, v0
v_lshrrev_b32 v2, 4, v0
v_lshl_add_u32 v1, v1, 2, v2
s_lshl_b32 s{sT0}, s{sT0}, 4
v_add_lshl_u32 v1, v1, s{sT0}, 1
global_load_ushort v2, v1, s[4:5]
L_g3:""")
    for k in range(4): a(f"global_load_dwordx4 {q(20+4*k)}, v16, s[{sM3}:{sM3+1}] offset:{1024*k} sc1")
    for k in range(4):
        a(f"s_waitcnt vmcnt({3-k})"); untag(20+4*k)
    tagcheck(range(20, 36), 3, "L_g3")
    stamp(13)
    for r in range(4): a(f"v_add_f32 v{20+r}, v{20+r}, v{24+r}")
    for r in range(4): a(f"v_add_f32 v{28+r}, v{28+r}, v{32+r}")
    for r in range(4): a(f"v_add_f32 v{20+r}, v{20+r}, v{28+r}")
    redscat(20)
    a(f"v_lshlrev_b32 v2, 16, v2\nv_add_f32_dpp v20, v20, v20 row_ror:8 {FULL}")
    rbf(20, 20)
    a("v_add_f32 v2, v2, v20")
    rbf(2, 2)
    if diag:
        import struct
        a(f"""s_memrealtime s[92:93]
s_waitcnt lgkmcnt(0)
s_sub_u32 s92, s92, s94
s_cmp_gt_i32 s{sCnt}, {spin-60}
s_cselect_b32 s92, s92, 0
v_cvt_f32_u32 v3, s92
v_mul_f32 v3, {hex(struct.unpack("<I", struct.pack("<f", diag/100))[0])}, v3
v_add_f32 v2, v2, v3""")
    a(f"""v_add_f32_dpp v2, v20, v2 row_shl:4 {FULL}
s_mov_b32 s56, 0x000f000f
s_mov_b32 s57, 0x000f000f
v_cvt_pk_bf16_f32 v2, v2, v2
s_mov_b64 exec, s[56:57]
global_store_short v1, v2, s[22:23]
s_cmp_eq_u32 s2, 27
s_cbranch_scc0 L_nobump
s_mov_b64 exec, 1
v_mov_b32 v1, 0xc0000
v_mov_b32 v2, s{sE}
global_store_dword v1, v2, s[26:27] sc1
L_nobump:
s_mov_b64 exec, -1
s_branch L_done""")
    KR, VR, S, Q = 16, 80, 144, 8
    a("L_main:")
    a(f"""s_sub_u32 s{sW}, s{sW}, 4
s_lshl_b32 s{sT0}, s{sW}, 12
v_lshl_add_u32 v1, v0, 4, s{sT0}
s_lshl_b32 s{sT0}, s{sH}, 21
s_lshl_b32 s{sT1}, s{sS}, 16
s_add_u32 s{sT0}, s{sT0}, s{sT1}
s_add_u32 s{sT0}, s{sT0}, 0x180000
s_mov_b32 s30, 0x10000
s_mov_b32 s34, 0x10000""")
    if rot:
        a(f"s_lshr_b32 s{sT1}, s2, 3\ns_add_u32 s{sT1}, s{sT1}, s2\ns_lshl_b32 s{sT1}, s{sT1}, 14")
    else:
        a(f"s_mov_b32 s{sT1}, 0")
    for t in range(4):
        a(f"s_and_b32 s{36+t}, s{sT1}, 0xc000")
        if t < 3: a(f"s_add_u32 s{sT1}, s{sT1}, 0x4000")
    a(f"""s_waitcnt lgkmcnt(0)
s_add_u32 s28, s6, s{sT0}
s_addc_u32 s29, s7, 0
s_add_u32 s32, s8, s{sT0}
s_addc_u32 s33, s9, 0""")
    stamp(1)
    def ld(n):
        i = n & 15
        base, srd = (KR, "s[28:31]") if n < 16 else (VR, "s[32:35]")
        a(f"buffer_load_dwordx4 {q(base+4*i)}, v1, {srd}, s{36+(i>>2)} offen offset:{1024*(i&3)}{nt}")
    for n in range(D0): ld(n)
    epoch_load(); groupptr()
    masks()
    epoch_tags()
    a(f"v_and_b32 v2, 15, v0\nv_lshlrev_b32 v12, 4, v2")
    a("s_mov_b32 s54, 0xcccccccc\ns_mov_b32 s55, 0xcccccccc\ns_mov_b32 s56, 0xaaaaaaaa\ns_mov_b32 s57, 0xaaaaaaaa")
    if D0 < D: a(f"s_waitcnt vmcnt({D0-1})")
    for n in range(D0, 16 + NV1):
        if n >= D: a(f"s_waitcnt vmcnt({D-1})")
        ld(n)
        if n == 15: stamp(2)
    stamp(3)
    a("s_barrier")
    stamp(4)
    a(f"ds_read_b128 {q(Q)}, v12 offset:{LQ}")
    a(f"s_waitcnt vmcnt({min(NV1, 63)}) lgkmcnt(0)")
    nxt = 16 + NV1
    for i0 in range(0, 16, 4):
        for r in range(4):
            for i in range(i0, i0 + 4):
                a(f"v_dot2_f32_bf16 v{S+i}, v{KR+4*i+r}, v{Q+r}, {'0' if r == 0 else 'v%d' % (S+i)}")
            if r == 3 or r == 1:
                if nxt < 32: ld(nxt); nxt += 1
    for i in range(8):
        a(f"v_add_f32_dpp v{S+i}, v{S+i}, v{S+i} row_ror:8 row_mask:0xf bank_mask:0x3")
    for i in range(8):
        a(f"v_add_f32_dpp v{S+i}, v{S+i+8}, v{S+i+8} row_ror:8 row_mask:0xf bank_mask:0xc")
    for i in range(4):
        a(f"v_add_f32_dpp v{S+i}, v{S+i}, v{S+i} row_shl:4 row_mask:0xf bank_mask:0x5")
    for i in range(4):
        a(f"v_add_f32_dpp v{S+i}, v{S+i+4}, v{S+i+4} row_shr:4 row_mask:0xf bank_mask:0xa")
    while nxt < 32: ld(nxt); nxt += 1
    for i in range(4):
        a(f"v_add_f32_dpp v{S+i}, v{S+i}, v{S+i} quad_perm:[2,3,0,1] {FULL}")
    a(f"v_cndmask_b32 v{S}, v{S}, v{S+2}, s[54:55]\nv_cndmask_b32 v{S+1}, v{S+1}, v{S+3}, s[54:55]")
    for i in range(2):
        a(f"v_add_f32_dpp v{S+i}, v{S+i}, v{S+i} quad_perm:[1,0,3,2] {FULL}")
    a(f"v_cndmask_b32 v{S}, v{S}, v{S+1}, s[56:57]")
    rbf(S, S)
    a(f"v_mul_f32 v{S}, 0x3db504f3, v{S}")
    rbf(S, S)
    a(f"v_mov_b32 v2, v{S}")
    allred("v_max_f32", 2, 3)
    a(f"""s_lshl_b32 s{sT0}, s{sW}, 2
v_mov_b32 v13, s{sT0}
v_mov_b32 v14, 0
ds_write_b32 v13, v2 offset:{LMX}
s_waitcnt lgkmcnt(0)""")
    stamp(5)
    a(f"""s_barrier
ds_read_b128 v[8:11], v14 offset:{LMX}
v_and_b32 v3, 15, v0
v_lshlrev_b32 v3, 5, v3
v_and_b32 v12, 16, v0
v_add_u32 v12, v3, v12
s_lshl_b32 s{sT0}, s{sW}, 9
v_add_u32 v15, s{sT0}, v12
s_waitcnt lgkmcnt(0)
v_max3_f32 v2, v8, v9, v10
v_max_f32 v2, v2, v11
v_sub_f32 v{S}, v{S}, v2
v_mul_f32 v{S}, 0x3fb8aa3b, v{S}
v_exp_f32 v3, v{S}
v_cvt_pk_bf16_f32 v{S}, v3, v3""")
    allred("v_add_f32", 3, S+1)
    a(f"ds_write_b32 v13, v3 offset:{LL}")
    for i in range(16):
        for t in range(4): a(f"v_and_b32_dpp v{KR+4*i+t}, v{S}, v{M+t} row_newbcast:{i} {FULL}")
    stamp(6)
    for i in range(16):
        a(f"s_waitcnt vmcnt({15-i})\nv_mfma_f32_16x16x32_bf16 {q(S+4)}, {q(KR+4*i)}, {q(VR+4*i)}, {'0' if i == 0 else q(S+4)}")
    stamp(7)
    a(f"""s_mov_b32 exec_hi, 0
ds_write_b128 v15, {q(S+4)} offset:{LO}
s_waitcnt lgkmcnt(0)
s_barrier""")
    stamp(8)
    a(f"""s_cmp_eq_u32 s{sW}, 0
s_cbranch_scc0 L_mdone
v_lshlrev_b32 v12, 4, v0""")
    for k in range(4): a(f"ds_read_b128 {q(16+4*k)}, v12 offset:{LO+512*k}")
    a(f"""ds_read_b128 v[8:11], v14 offset:{LL}
v_lshrrev_b32 v13, 3, v0
v_lshlrev_b32 v13, 10, v13
v_and_b32 v12, 0x70, v12
v_add_u32 v13, v13, v12
s_lshl_b32 s{sT0}, s{sS}, 7
s_add_u32 s{sT0}, s{sT0}, 8192
v_add_u32 v13, s{sT0}, v13
s_add_u32 s{sT0}, s{sT0}, 4096
v_mov_b32 v14, s{sT0}
s_waitcnt lgkmcnt(3)""")
    for r in range(4): a(f"v_add_f32 v{16+r}, v{16+r}, v{20+r}")
    a("s_waitcnt lgkmcnt(1)")
    for r in range(4): a(f"v_add_f32 v{24+r}, v{24+r}, v{28+r}")
    for r in range(4): a(f"v_add_f32 v{16+r}, v{16+r}, v{24+r}")
    tag(16)
    a(f"""global_store_dwordx4 v13, v[16:19], s[{sG}:{sG+1}]
s_waitcnt lgkmcnt(0)
v_add_f32 v8, v8, v9
v_add_f32 v10, v10, v11
v_add_f32 v3, v8, v10""")
    a(f"v_bfi_b32 v8, 63, s{sTg}, v2\nv_bfi_b32 v9, 63, s{sTg+1}, v3\nv_mov_b32 v10, s{sE}\nv_mov_b32 v11, s{sE}")
    a(f"""s_mov_b64 exec, 1
global_store_dwordx4 v14, v[8:11], s[{sG}:{sG+1}]""")
    if dual:
        a("global_store_dwordx4 v14, v[8:11], s[62:63] sc1\ns_mov_b32 exec_lo, -1\nglobal_store_dwordx4 v13, v[16:19], s[62:63] sc1")
    stamp(9)
    a(f"L_mdone:\ns_mov_b64 exec, -1")
    if stamps: a(f"s_add_u32 s{sW}, s{sW}, 4")
    a("L_done:")
    if stamps:
        a("s_waitcnt vmcnt(0)")
        stamp(14)
        a("s_waitcnt lgkmcnt(0)\nv_mov_b32 v4, 0")
        for n in range(15): a(f"v_writelane_b32 v4, s{64+2*n}, {n}")
        a(f"v_writelane_b32 v4, s{sCnt}, 15")
        a(f"""s_lshl_b32 s{sT0}, s2, 3
s_add_u32 s{sT0}, s{sT0}, s{sW}
s_lshl_b32 s{sT0}, s{sT0}, 8
s_add_u32 s{sT0}, s{sT0}, 0x1000000
v_lshl_add_u32 v5, v0, 2, s{sT0}
global_store_dword v5, v4, s[26:27]""")
        if dbgwave is not None:
            a(f"""s_lshl_b32 s{sT0}, s2, 3
s_add_u32 s{sT0}, s{sT0}, s{sW}
s_cmp_eq_u32 s{sT0}, {dbgwave}
s_cbranch_scc0 L_end
v_subrev_u32 v4, s64, v4
v_lshlrev_b32 v5, 2, v0
s_mov_b64 exec, 0x7fff
global_store_dword v5, v4, s[24:25]""")
    a("L_end:\ns_endpgm")
    o.append(f""".section .rodata,"a"
.p2align 6
.amdhsa_kernel {KN}
  .amdhsa_next_free_vgpr 160
  .amdhsa_next_free_sgpr 102
  .amdhsa_accum_offset 160
  .amdhsa_group_segment_fixed_size 0
  .amdhsa_kernarg_size 96
  .amdhsa_user_sgpr_count 2
  .amdhsa_user_sgpr_kernarg_segment_ptr 1
  .amdhsa_system_sgpr_workgroup_id_x 1
  .amdhsa_float_denorm_mode_32 3
.end_amdhsa_kernel""")
    txt = "\n".join(o)
    if stamps:
        import re
        txt = re.sub(r"lgkmcnt\(\d+\)", "lgkmcnt(0)", txt)
    return pad(txt) + "\n"
if __name__ == "__main__":
    kw = eval("dict(" + (sys.argv[2] if len(sys.argv) > 2 else "") + ")")
    open(sys.argv[1], "w").write(gen(**kw))
ROLES = {"front": slice(0, 4), "main": slice(4, 8)}
```

```python
import sys
from asmlib import pad
KN = "parallel_sum__sliding_block_cached__glu_gated_glu__decode_kernel"
FULL = "row_mask:0xf bank_mask:0xf"
def q(r, n=4): return f"v[{r}:{r+n-1}]"

def gen(stamps=False, D=6, D0=2, NV1=8, nt=" nt", rot=True, dual=True, alt=31, diag=0, diagw=(0,0), g1wait=0, g2wait=12, prefetch=0, spin=100000, dbgwave=None):
    o = []
    def a(s):
        for l in s.split("\n"): o.append("    " + l.strip() if not l.strip().endswith(":") else l.strip())
    nst = [0]
    def stamp(k):
        if stamps: a(f"s_memrealtime s[{64+2*k}:{65+2*k}]")
    def allred(op, v, t):
        for m in ("quad_perm:[1,0,3,2]", "quad_perm:[2,3,0,1]", "row_half_mirror", "row_mirror"):
            a(f"{op}_dpp v{v}, v{v}, v{v} {m} {FULL}")
        for p in ("16", "32"):
            a(f"v_mov_b32 v{t}, v{v}\nv_permlane{p}_swap_b32 v{t}, v{v}\n{op} v{v}, v{v}, v{t}")
    def redscat(r):
        a(f"v_permlane32_swap_b32 v{r}, v{r+2}\nv_permlane32_swap_b32 v{r+1}, v{r+3}")
        a(f"v_add_f32 v{r}, v{r}, v{r+2}\nv_add_f32 v{r+1}, v{r+1}, v{r+3}")
        a(f"v_permlane16_swap_b32 v{r}, v{r+1}\nv_add_f32 v{r}, v{r}, v{r+1}")
    def rbf(d, s):
        a(f"v_cvt_pk_bf16_f32 v{d}, v{s}, v{s}\nv_and_b32 v{d}, 0xffff0000, v{d}")
    sH, sS, sW, sCnt, sT0, sT1, sT2 = 40, 41, 3, 42, 43, 44, 45
    sG = 46
    sM3 = 48
    sRS = 50
    sE, sTg = 51, 58
    def epoch_load(): a(f"s_load_dword s{sE}, s[26:27], 0xc0000")
    def epoch_tags():
        a(f"s_waitcnt lgkmcnt(0)\ns_add_u32 s{sE}, s{sE}, 0x41041")
        for r in range(4): a(f"s_bfe_u32 s{sTg+r}, s{sE}, {0x60000 + 6*r}")
    def tag(r0, n=4):
        for r in range(n): a(f"v_bfi_b32 v{r0+r}, 63, s{sTg+r}, v{r0+r}")
    def untag(r0, n=4):
        for r in range(n): a(f"v_xor_b32 v{r0+r}, s{sTg+r}, v{r0+r}")
    def gstore(op, va, data):
        a(f"{op} {va}, {data}, s[{sG}:{sG+1}]")
        if dual: a(f"{op} {va}, {data}, s[62:63] sc1")
    def tagcheck(regs, t, lab, alt_=False, full=()):
        regs = list(regs)
        a(f"v_or3_b32 v{t}, v{regs[0]}, v{regs[1]}, v{regs[2]}"); regs = regs[3:]
        while len(regs) >= 2:
            a(f"v_or3_b32 v{t}, v{t}, v{regs[0]}, v{regs[1]}"); regs = regs[2:]
        if regs: a(f"v_or_b32 v{t}, v{t}, v{regs[0]}")
        a(f"v_and_b32 v{t}, 63, v{t}")
        if full: a(f"v_or3_b32 v{t}, v{t}, v{full[0]}, v{full[1]}")
        a(f"""v_cmp_ne_u32 vcc, 0, v{t}
s_cbranch_vccz {lab}_ok
s_sub_i32 s{sCnt}, s{sCnt}, 1""")
        if alt_ and dual:
            a(f"""s_add_u32 s98, s98, 1
s_and_b32 s99, s98, {alt}
s_cselect_b64 s[96:97], s[{sG}:{sG+1}], s[62:63]""")
        a(f"""s_cmp_gt_i32 s{sCnt}, 0
s_cbranch_scc1 {lab}
{lab}_ok:""")
    LQ, LH, LMX, LL, LO, LY = 0, 256, 512, 528, 1024, 3072
    M = 4
    hdr = open("cdna_kernels/" + KN[:-7] + ".s.ref").read().split("; Override")[0]
    o.append(hdr.rstrip())
    o.append("; @launch grid=(256,1,1) block=(512,1,1) lds=8192")
    o.append('.amdgcn_target "amdgcn-amd-amdhsa--gfx950"\n.text')
    o.append(f".globl {KN}\n.p2align 8\n.type {KN},@function\n{KN}:")
    if stamps:
        for k in range(1, 15): a(f"s_mov_b32 s{64+2*k}, 0")
    stamp(0)
    if diag: a("s_memrealtime s[94:95]")
    a(f"""s_load_dwordx16 s[4:19], s[0:1], 0
s_load_dwordx8 s[20:27], s[0:1], 64
s_cmp_ge_u32 s2, 256
s_cbranch_scc1 L_end
v_lshrrev_b32 v1, 6, v0
v_and_b32 v0, 63, v0
s_and_b32 s{sH}, s2, 31
v_readfirstlane_b32 s{sW}, v1
s_lshr_b32 s{sS}, s2, 5
s_mov_b32 s31, 0x20000
s_mov_b32 s35, 0x20000
s_mov_b32 s{sCnt}, {spin}
s_cmp_ge_u32 s{sW}, 4
s_cbranch_scc1 L_main""")
    def masks():
        a(f"""v_and_b32 v2, 1, v0
v_lshlrev_b32 v2, 4, v2
v_mov_b32 v3, 0xffff
v_lshlrev_b32 v2, v2, v3
v_bfe_u32 v3, v0, 1, 2""")
        for t in range(4):
            a(f"v_cmp_eq_u32 vcc, {t}, v3\nv_cndmask_b32 v{M+t}, 0, v2, vcc")
    def groupptr():
        a(f"""s_lshl_b32 s{sT0}, s{sH}, 14
s_add_u32 s{sG}, s26, s{sT0}
s_addc_u32 s{sG+1}, s27, 0
s_add_u32 s62, s{sG}, 0x100000
s_addc_u32 s63, s{sG+1}, 0
s_mov_b64 s[96:97], s[{sG}:{sG+1}]
s_add_u32 s{sM3}, s26, 0x80000
s_addc_u32 s{sM3+1}, s27, 0""")
    XA, XB, W, A, T, DD = 8, 14, 20, 68, 108, 124
    a(f"""s_cmp_lt_u32 s{sW}, 2
s_movk_i32 s{sRS}, 3456
s_cselect_b32 s{sRS}, 8192, s{sRS}
v_lshrrev_b32 v1, 3, v0
v_mul_u32_u24 v1, 10, v1
s_mul_i32 s{sT0}, s{sS}, 80
v_add_u32 v1, s{sT0}, v1
v_mul_u32_u24 v2, 20, v0
v_lshlrev_b32 v3, 1, v1
v_mul_u32_u24 v1, s{sRS}, v1
v_and_b32 v19, 7, v0
v_lshl_add_u32 v1, v19, 4, v1
s_lshl_b32 s{sT0}, s{sH}, 8
s_lshl_b32 s{sT1}, s{sW}, 7
s_add_u32 s{sT0}, s{sT0}, s{sT1}
s_lshl_b32 s{sT1}, s{sH}, 7
s_sub_u32 s30, 2211840, s{sT1}
s_cmp_lt_u32 s{sH}, 27
s_cselect_b32 s30, s30, 0
s_sub_u32 s{sT2}, 5242880, s{sT0}
s_cmp_lt_u32 s{sW}, 2
s_cselect_b32 s30, s{sT2}, s30
s_cselect_b32 s{sT0}, s{sT0}, s{sT1}
s_waitcnt lgkmcnt(0)
global_load_dwordx4 {q(XA)}, v2, s[4:5]
global_load_dword v{XA+4}, v2, s[4:5] offset:16
global_load_dwordx4 {q(XB)}, v3, s[4:5]
global_load_dword v{XB+4}, v3, s[4:5] offset:16
s_cselect_b32 s28, s10, s16
s_cselect_b32 s29, s11, s17
s_cmp_eq_u32 s{sW}, 3
s_cselect_b32 s28, s18, s28
s_cselect_b32 s29, s19, s29
s_add_u32 s28, s28, s{sT0}
s_addc_u32 s29, s29, 0
s_mov_b32 s{sT1}, 0""")
    for i in range(10):
        a(f"buffer_load_dwordx4 {q(W+4*i)}, v1, s[28:31], s{sT1} offen{nt}")
        if i < 9: a(f"s_add_u32 s{sT1}, s{sT1}, s{sRS}")
    npf = 0
    if prefetch:
        a(f"""s_getpc_b64 s[52:53]
s_and_b32 s52, s52, 0xffffff00
v_lshlrev_b32 v2, 7, v0
v_min_u32 v2, {prefetch}, v2
global_load_dword v13, v2, s[52:53]""")
        npf = 1
    epoch_load()
    stamp(1)
    masks(); groupptr()
    a(f"s_waitcnt vmcnt({12+npf})")
    stamp(2)
    for i in range(5):
        a(f"v_lshlrev_b32 v{T+2*i}, 16, v{XA+i}\nv_and_b32 v{T+2*i+1}, 0xffff0000, v{XA+i}")
    a(f"v_add_f32 v2, v{T}, v{T+1}\nv_add_f32 v3, v{T+2}, v{T+3}")
    for i in range(2, 5):
        a(f"v_add_f32 v2, v2, v{T+2*i}\nv_add_f32 v3, v3, v{T+2*i+1}")
    a("v_add_f32 v2, v2, v3")
    allred("v_add_f32", 2, 3)
    a("v_mul_f32 v2, 0x3acccccd, v2")
    for i in range(10): a(f"v_sub_f32 v{T+i}, v{T+i}, v2")
    a(f"v_mul_f32 v3, v{T}, v{T}\nv_mul_f32 v19, v{T+1}, v{T+1}")
    for i in range(1, 5):
        a(f"v_fmac_f32 v3, v{T+2*i}, v{T+2*i}\nv_fmac_f32 v19, v{T+2*i+1}, v{T+2*i+1}")
    a("v_add_f32 v3, v3, v19")
    allred("v_add_f32", 3, 19)
    a("v_mul_f32 v3, 0x3acccccd, v3")
    rbf(2, 2); rbf(3, 3)
    a("v_add_f32 v3, 0x3727c5ac, v3")
    rbf(3, 3)
    a("v_sqrt_f32 v3, v3")
    rbf(3, 3)
    a(f"v_rcp_f32 v3, v3\ns_waitcnt vmcnt({10+npf})")
    for i in range(5):
        a(f"v_lshlrev_b32 v{T+2*i}, 16, v{XB+i}\nv_and_b32 v{T+2*i+1}, 0xffff0000, v{XB+i}")
    for i in range(10): a(f"v_sub_f32 v{T+i}, v{T+i}, v2")
    for i in range(5): a(f"v_cvt_pk_bf16_f32 v{XB+i}, v{T+2*i}, v{T+2*i+1}")
    for i in range(5):
        a(f"v_lshlrev_b32 v{T+2*i}, 16, v{XB+i}\nv_and_b32 v{T+2*i+1}, 0xffff0000, v{XB+i}")
    for i in range(10): a(f"v_mul_f32 v{T+i}, v{T+i}, v3")
    for i in range(10): a(f"v_cvt_pk_bf16_f32 v{T+i}, v{T+i}, v{T+i}")
    for i in range(10):
        for t in range(4): a(f"v_and_b32 v{A+4*i+t}, v{T+i}, v{M+t}")
    stamp(3)
    epoch_tags()
    for i in range(10):
        a(f"s_waitcnt vmcnt({9-i+npf})")
        a(f"v_mfma_f32_16x16x32_bf16 {q(DD)}, {q(A+4*i)}, {q(W+4*i)}, {'0' if i == 0 else q(DD)}")
    stamp(4)
    a(f"""v_and_b32 v1, 7, v0
v_lshlrev_b32 v1, 5, v1
v_and_b32 v2, 16, v0
v_add_u32 v1, v1, v2
s_lshl_b32 s{sT0}, s{sS}, 10
s_lshl_b32 s{sT1}, s{sW}, 8
s_add_u32 s{sT0}, s{sT0}, s{sT1}
v_add_u32 v1, s{sT0}, v1""")
    a(f"""v_permlane32_swap_b32 v{DD}, v{DD+2}
v_permlane32_swap_b32 v{DD+1}, v{DD+3}
v_add_f32_dpp v{DD}, v{DD+2}, v{DD} row_ror:8 {FULL}
v_add_f32_dpp v{DD+1}, v{DD+3}, v{DD+1} row_ror:8 {FULL}
v_permlane32_swap_b32 v{DD}, v{DD+2}
v_permlane32_swap_b32 v{DD+1}, v{DD+3}""")
    tag(DD)
    a("s_mov_b64 exec, 0x00ff00ff")
    gstore("global_store_dwordx4", "v1", q(DD))
    a("s_mov_b64 exec, -1")
    stamp(5)
    a(f"""v_and_b32 v2, 15, v0
v_lshlrev_b32 v2, 4, v2
v_and_b32 v3, 8, v0
v_lshl_add_u32 v3, v3, 4, v2
s_lshl_b32 s{sT0}, s{sW}, 7
s_add_u32 s{sT0}, s{sT0}, 256
s_cmp_lt_u32 s{sW}, 2
s_cselect_b64 vcc, -1, 0
s_cselect_b32 s{sT0}, s{sT1}, s{sT0}
v_cndmask_b32 v2, v3, v2, vcc
v_lshrrev_b32 v3, 4, v0
v_lshl_add_u32 v2, v3, 10, v2
v_add_u32 v2, s{sT0}, v2
v_add_u32 v10, 0x1000, v2
s_mov_b32 s54, 0x00ff00ff
s_mov_b32 s55, 0x00ff00ff""")
    if g1wait: a("s_waitcnt vmcnt(0)")
    a(f"""s_mov_b32 s98, 0
L_g1:
global_load_dwordx4 {q(W)}, v2, s[96:97] sc1
global_load_dwordx4 {q(W+4)}, v10, s[96:97] sc1
s_waitcnt vmcnt(0)""")
    untag(W); untag(W+4)
    tagcheck(range(W, W+8), 3, "L_g1", True)
    stamp(6)
    for r in range(4): a(f"v_add_f32 v{W+r}, v{W+r}, v{W+4+r}")
    redscat(W)
    a(f"""v_cvt_pk_bf16_f32 v{W}, v{W}, v{W}
v_and_b32 v2, 15, v0
v_lshrrev_b32 v3, 4, v0
v_lshl_add_u32 v2, v2, 2, v3
s_cmp_lt_u32 s{sW}, 2
s_cbranch_scc0 L_glu
s_lshl_b32 s{sT0}, s{sW}, 6
v_add_lshl_u32 v2, v2, s{sT0}, 1
ds_write_b16 v2, v{W} offset:{LQ}
s_branch L_b1
L_glu:
v_and_b32 v{W}, 0xffff0000, v{W}
v_mul_f32 v3, 0xbfb8aa3b, v{W}
v_exp_f32 v3, v3
s_lshl_b32 s{sT0}, s{sW}, 5
v_add_f32 v3, 1.0, v3
v_rcp_f32 v3, v3
s_sub_u32 s{sT0}, s{sT0}, 64""")
    rbf(3, 3)
    a(f"""v_mul_f32_dpp v3, v{W}, v3 row_ror:8 {FULL}
v_add_lshl_u32 v2, v2, s{sT0}, 2
v_cvt_pk_bf16_f32 v3, v3, v3
s_mov_b64 exec, s[54:55]
ds_write_b32 v2, v3 offset:{LH}
s_mov_b64 exec, -1
L_b1:
s_waitcnt lgkmcnt(0)
s_barrier""")
    stamp(7)
    WD, WO, AF, ML = 20, 36, 100, 116
    a(f"""v_lshrrev_b32 v3, 4, v0
s_lshl_b32 s{sT0}, s{sW}, 6
v_lshl_add_u32 v2, v3, 4, s{sT0}
ds_read_b128 v[8:11], v2 offset:{LH}
s_mul_i32 s{sT0}, s{sH}, {128*1280}
s_mul_i32 s{sT1}, s{sS}, 160
s_add_u32 s{sT0}, s{sT0}, s{sT1}
s_add_u32 s28, s12, s{sT0}
s_addc_u32 s29, s13, 0
s_sub_u32 s30, 5242880, s{sT0}
s_mul_i32 s{sT0}, s{sH}, {64*1280}
s_add_u32 s{sT0}, s{sT0}, s{sT1}
s_add_u32 s32, s20, s{sT0}
s_addc_u32 s33, s21, 0
s_sub_u32 s34, 2211840, s{sT0}
s_cmp_lt_u32 s{sH}, 27
s_cselect_b32 s34, s34, 0
v_and_b32 v2, 15, v0
v_cmp_gt_u32 vcc, 10, v2
v_lshlrev_b32 v2, 4, v2
v_mov_b32 v12, 0x40000000
v_cndmask_b32 v2, v12, v2, vcc
s_mul_i32 s{sT0}, s{sW}, {32*1280}
s_movk_i32 s{sT1}, 1280
v_mad_u32_u24 v12, v3, s{sT1}, v2
v_add_u32 v12, s{sT0}, v12
s_movk_i32 s{sT1}, 5120
v_mad_u32_u24 v13, v3, s{sT1}, v2
s_mul_i32 s{sT0}, s{sW}, {16*1280}
v_add_u32 v13, s{sT0}, v13""")
    for t in range(4): a(f"v_cndmask_b32 v{ML+t}, 0, v{M+t}, s[54:55]")
    for t in range(4): a(f"v_cndmask_b32 v{M+t}, v{M+t}, 0, s[54:55]")
    a(f"""s_lshl_b32 s{sT0}, s{sW}, 10
s_add_u32 s{sT0}, s{sT0}, 8192
v_lshl_add_u32 v14, v0, 4, s{sT0}
v_and_b32 v15, 56, v0
v_lshlrev_b32 v15, 4, v15
v_add_u32 v15, 12288, v15
s_waitcnt lgkmcnt(0)""")
    for i in range(4):
        for t in range(4): a(f"v_and_b32 v{AF+4*i+t}, v{8+i}, v{M+t}")
    a("s_barrier")
    stamp(8)
    for i in range(4):
        a(f"buffer_load_dwordx4 {q(WD+4*i)}, v13, s[32:35], 0 offen offset:{1280*i}{nt}")
    a(f"s_mov_b32 s{sT0}, 0")
    for i in range(8):
        a(f"buffer_load_dwordx4 {q(WO+4*i)}, v12, s[28:31], s{sT0} offen{nt}")
        if i < 7: a(f"s_add_u32 s{sT0}, s{sT0}, 5120")
    stamp(9)
    a(f"""s_lshl_b32 s{sT0}, s{sW}, 10
v_lshlrev_b32 v16, 4, v0
v_add_u32 v17, s{sT0}, v16
v_and_b32 v1, 15, v0
v_lshrrev_b32 v2, 1, v1
v_lshlrev_b32 v2, 12, v2
v_and_b32 v3, 1, v1
v_lshl_add_u32 v2, v3, 5, v2
v_and_b32 v3, 16, v0
v_add_u32 v2, v2, v3
v_and_b32 v3, 32, v0
v_lshl_add_u32 v2, v3, 1, v2
s_mul_i32 s{sT0}, s{sS}, 20480
s_lshl_b32 s{sT1}, s{sH}, 7
s_add_u32 s{sT0}, s{sT0}, s{sT1}
v_add_u32 v18, s{sT0}, v2
s_mov_b32 s56, 0x03ff03ff
s_mov_b32 s57, 0x03ff03ff
s_barrier""")
    stamp(10)
    for i in range(4):
        a(f"s_waitcnt vmcnt({11-i})\nv_mfma_f32_16x16x32_bf16 {q(DD)}, {q(AF+4*i)}, {q(WD+4*i)}, {'0' if i == 0 else q(DD)}")
    if g2wait < 8: a(f"s_waitcnt vmcnt({g2wait})")
    a(f"""s_mov_b32 s98, 0
s_mov_b64 s[96:97], s[{sG}:{sG+1}]
L_g2:
global_load_dwordx4 v[120:123], v15, s[96:97] sc1
global_load_dwordx4 v[8:11], v14, s[96:97] sc1
s_waitcnt vmcnt(0)""")
    a(f"v_xor_b32 v2, s{sTg}, v120\nv_xor_b32 v3, s{sTg+1}, v121\nv_xor_b32 v122, s{sE}, v122\nv_xor_b32 v123, s{sE}, v123")
    untag(8)
    tagcheck([2, 3, 8, 9, 10, 11], 1, "L_g2", True, (122, 123))
    stamp(11)
    def red8(op, v, t):
        a(f"{op}_dpp v{v}, v{v}, v{v} row_ror:8 {FULL}")
        for p in ("16", "32"):
            a(f"v_mov_b32 v{t}, v{v}\nv_permlane{p}_swap_b32 v{t}, v{v}\n{op} v{v}, v{v}, v{t}")
    a("v_mov_b32 v1, v2")
    red8("v_max_f32", 1, 19)
    a("v_sub_f32 v2, v2, v1\nv_mul_f32 v2, 0x3fb8aa3b, v2\nv_exp_f32 v2, v2")
    a("v_mul_f32 v3, v3, v2")
    for r in range(4): a(f"v_mul_f32 v{8+r}, v{8+r}, v2")
    red8("v_add_f32", 3, 19)
    redscat(8)
    a(f"v_rcp_f32 v3, v3\nv_add_f32_dpp v8, v8, v8 row_ror:8 {FULL}\nv_mul_f32 v8, v8, v3\nv_cvt_pk_bf16_f32 v8, v8, v8")
    for i in range(8):
        for t in range(4): a(f"v_and_b32_dpp v{A+4*i+t}, v8, v{ML+t} row_newbcast:{i} {FULL}")
        if i: a(f"v_mfma_f32_16x16x32_bf16 {q(DD)}, {q(A+4*i-4)}, {q(WO+4*i-4)}, {q(DD)}")
    a(f"v_mfma_f32_16x16x32_bf16 {q(DD)}, {q(A+28)}, {q(WO+28)}, {q(DD)}")
    a(f"ds_write_b128 v17, {q(DD)} offset:{LY}\ns_waitcnt lgkmcnt(0)\ns_barrier")
    stamp(12)
    a(f"""s_cmp_eq_u32 s{sW}, 0
s_cbranch_scc0 L_notpub""")
    for k in range(4): a(f"ds_read_b128 {q(20+4*k)}, v16 offset:{LY+1024*k}")
    a("s_waitcnt lgkmcnt(2)")
    for r in range(4): a(f"v_add_f32 v{20+r}, v{20+r}, v{24+r}")
    a("s_waitcnt lgkmcnt(0)")
    for r in range(4): a(f"v_add_f32 v{28+r}, v{28+r}, v{32+r}")
    for r in range(4): a(f"v_add_f32 v{20+r}, v{20+r}, v{28+r}")
    tag(20)
    a(f"""s_mov_b64 exec, s[56:57]
global_store_dwordx4 v18, v[20:23], s[{sM3}:{sM3+1}] sc1
s_mov_b64 exec, -1
s_branch L_done
L_notpub:
s_cmp_eq_u32 s{sW}, 1
s_cbranch_scc0 L_done
s_cmp_ge_u32 s{sH}, 27
s_cbranch_scc0 L_done
s_sub_u32 s{sT0}, s{sH}, 27
s_lshl_b32 s{sT0}, s{sT0}, 3
s_add_u32 s{sT0}, s{sT0}, s{sS}
s_lshl_b32 s{sT1}, s{sT0}, 12
v_add_u32 v16, s{sT1}, v16
v_and_b32 v1, 3, v0
v_lshrrev_b32 v2, 4, v0
v_lshl_add_u32 v1, v1, 2, v2
s_lshl_b32 s{sT0}, s{sT0}, 4
v_add_lshl_u32 v1, v1, s{sT0}, 1
global_load_ushort v2, v1, s[4:5]
L_g3:""")
    for k in range(4): a(f"global_load_dwordx4 {q(20+4*k)}, v16, s[{sM3}:{sM3+1}] offset:{1024*k} sc1")
    for k in range(4):
        a(f"s_waitcnt vmcnt({3-k})"); untag(20+4*k)
    tagcheck(range(20, 36), 3, "L_g3")
    stamp(13)
    for r in range(4): a(f"v_add_f32 v{20+r}, v{20+r}, v{24+r}")
    for r in range(4): a(f"v_add_f32 v{28+r}, v{28+r}, v{32+r}")
    for r in range(4): a(f"v_add_f32 v{20+r}, v{20+r}, v{28+r}")
    redscat(20)
    a(f"v_lshlrev_b32 v2, 16, v2\nv_add_f32_dpp v20, v20, v20 row_ror:8 {FULL}")
    rbf(20, 20)
    a("v_add_f32 v2, v2, v20")
    rbf(2, 2)
    if diag:
        import struct
        a(f"""s_memrealtime s[92:93]
s_waitcnt lgkmcnt(0)
s_sub_u32 s92, s92, s94
s_cmp_gt_u32 s92, {diagw[0]}
s_cselect_b32 s92, s92, 0
s_cmp_lt_u32 s92, {diagw[1]}
s_cselect_b32 s92, s92, 0
s_cmp_lt_u32 s98, 31
s_cselect_b32 s92, s92, 0
v_cvt_f32_u32 v3, s92
v_mul_f32 v3, {hex(struct.unpack("<I", struct.pack("<f", diag/100))[0])}, v3
v_add_f32 v2, v2, v3""")
    a(f"""v_add_f32_dpp v2, v20, v2 row_shl:4 {FULL}
s_mov_b32 s56, 0x000f000f
s_mov_b32 s57, 0x000f000f
v_cvt_pk_bf16_f32 v2, v2, v2
s_mov_b64 exec, s[56:57]
global_store_short v1, v2, s[22:23]
s_cmp_eq_u32 s2, 27
s_cbranch_scc0 L_nobump
s_mov_b64 exec, 1
v_mov_b32 v1, 0xc0000
v_mov_b32 v2, s{sE}
global_store_dword v1, v2, s[26:27] sc1
L_nobump:
s_mov_b64 exec, -1
s_branch L_done""")
    KR, VR, S, Q = 16, 80, 144, 8
    a("L_main:")
    a(f"""s_sub_u32 s{sW}, s{sW}, 4
s_lshl_b32 s{sT0}, s{sW}, 12
v_lshl_add_u32 v1, v0, 4, s{sT0}
s_lshl_b32 s{sT0}, s{sH}, 21
s_lshl_b32 s{sT1}, s{sS}, 16
s_add_u32 s{sT0}, s{sT0}, s{sT1}
s_add_u32 s{sT0}, s{sT0}, 0x180000
s_mov_b32 s30, 0x10000
s_mov_b32 s34, 0x10000""")
    if rot:
        a(f"s_lshr_b32 s{sT1}, s2, 3\ns_add_u32 s{sT1}, s{sT1}, s2\ns_lshl_b32 s{sT1}, s{sT1}, 14")
    else:
        a(f"s_mov_b32 s{sT1}, 0")
    for t in range(4):
        a(f"s_and_b32 s{36+t}, s{sT1}, 0xc000")
        if t < 3: a(f"s_add_u32 s{sT1}, s{sT1}, 0x4000")
    a(f"""s_waitcnt lgkmcnt(0)
s_add_u32 s28, s6, s{sT0}
s_addc_u32 s29, s7, 0
s_add_u32 s32, s8, s{sT0}
s_addc_u32 s33, s9, 0""")
    stamp(1)
    def ld(n):
        i = n & 15
        base, srd = (KR, "s[28:31]") if n < 16 else (VR, "s[32:35]")
        a(f"buffer_load_dwordx4 {q(base+4*i)}, v1, {srd}, s{36+(i>>2)} offen offset:{1024*(i&3)}{nt}")
    for n in range(D0): ld(n)
    epoch_load(); groupptr()
    masks()
    epoch_tags()
    a(f"v_and_b32 v2, 15, v0\nv_lshlrev_b32 v12, 4, v2")
    a("s_mov_b32 s54, 0xcccccccc\ns_mov_b32 s55, 0xcccccccc\ns_mov_b32 s56, 0xaaaaaaaa\ns_mov_b32 s57, 0xaaaaaaaa")
    if D0 < D: a(f"s_waitcnt vmcnt({D0-1})")
    for n in range(D0, 16 + NV1):
        if n >= D: a(f"s_waitcnt vmcnt({D-1})")
        ld(n)
        if n == 15: stamp(2)
    stamp(3)
    a("s_barrier")
    stamp(4)
    a(f"ds_read_b128 {q(Q)}, v12 offset:{LQ}")
    a(f"s_waitcnt vmcnt({min(NV1, 63)}) lgkmcnt(0)")
    nxt = 16 + NV1
    for i0 in range(0, 16, 4):
        for r in range(4):
            for i in range(i0, i0 + 4):
                a(f"v_dot2_f32_bf16 v{S+i}, v{KR+4*i+r}, v{Q+r}, {'0' if r == 0 else 'v%d' % (S+i)}")
            if r == 3 or r == 1:
                if nxt < 32: ld(nxt); nxt += 1
    for i in range(8):
        a(f"v_add_f32_dpp v{S+i}, v{S+i}, v{S+i} row_ror:8 row_mask:0xf bank_mask:0x3")
    for i in range(8):
        a(f"v_add_f32_dpp v{S+i}, v{S+i+8}, v{S+i+8} row_ror:8 row_mask:0xf bank_mask:0xc")
    for i in range(4):
        a(f"v_add_f32_dpp v{S+i}, v{S+i}, v{S+i} row_shl:4 row_mask:0xf bank_mask:0x5")
    for i in range(4):
        a(f"v_add_f32_dpp v{S+i}, v{S+i+4}, v{S+i+4} row_shr:4 row_mask:0xf bank_mask:0xa")
    while nxt < 32: ld(nxt); nxt += 1
    for i in range(4):
        a(f"v_add_f32_dpp v{S+i}, v{S+i}, v{S+i} quad_perm:[2,3,0,1] {FULL}")
    a(f"v_cndmask_b32 v{S}, v{S}, v{S+2}, s[54:55]\nv_cndmask_b32 v{S+1}, v{S+1}, v{S+3}, s[54:55]")
    for i in range(2):
        a(f"v_add_f32_dpp v{S+i}, v{S+i}, v{S+i} quad_perm:[1,0,3,2] {FULL}")
    a(f"v_cndmask_b32 v{S}, v{S}, v{S+1}, s[56:57]")
    rbf(S, S)
    a(f"v_mul_f32 v{S}, 0x3db504f3, v{S}")
    rbf(S, S)
    a(f"v_mov_b32 v2, v{S}")
    allred("v_max_f32", 2, 3)
    a(f"""s_lshl_b32 s{sT0}, s{sW}, 2
v_mov_b32 v13, s{sT0}
v_mov_b32 v14, 0
ds_write_b32 v13, v2 offset:{LMX}
s_waitcnt lgkmcnt(0)""")
    stamp(5)
    a(f"""s_barrier
ds_read_b128 v[8:11], v14 offset:{LMX}
v_and_b32 v3, 15, v0
v_lshlrev_b32 v3, 5, v3
v_and_b32 v12, 16, v0
v_add_u32 v12, v3, v12
s_lshl_b32 s{sT0}, s{sW}, 9
v_add_u32 v15, s{sT0}, v12
s_waitcnt lgkmcnt(0)
v_max3_f32 v2, v8, v9, v10
v_max_f32 v2, v2, v11
v_sub_f32 v{S}, v{S}, v2
v_mul_f32 v{S}, 0x3fb8aa3b, v{S}
v_exp_f32 v3, v{S}
v_cvt_pk_bf16_f32 v{S}, v3, v3""")
    allred("v_add_f32", 3, S+1)
    a(f"ds_write_b32 v13, v3 offset:{LL}")
    for i in range(16):
        for t in range(4): a(f"v_and_b32_dpp v{KR+4*i+t}, v{S}, v{M+t} row_newbcast:{i} {FULL}")
    stamp(6)
    for i in range(16):
        a(f"s_waitcnt vmcnt({15-i})\nv_mfma_f32_16x16x32_bf16 {q(S+4)}, {q(KR+4*i)}, {q(VR+4*i)}, {'0' if i == 0 else q(S+4)}")
    stamp(7)
    a(f"""s_mov_b32 exec_hi, 0
ds_write_b128 v15, {q(S+4)} offset:{LO}
s_waitcnt lgkmcnt(0)
s_barrier""")
    stamp(8)
    a(f"""s_cmp_eq_u32 s{sW}, 0
s_cbranch_scc0 L_mdone
v_lshlrev_b32 v12, 4, v0""")
    for k in range(4): a(f"ds_read_b128 {q(16+4*k)}, v12 offset:{LO+512*k}")
    a(f"""ds_read_b128 v[8:11], v14 offset:{LL}
v_lshrrev_b32 v13, 3, v0
v_lshlrev_b32 v13, 10, v13
v_and_b32 v12, 0x70, v12
v_add_u32 v13, v13, v12
s_lshl_b32 s{sT0}, s{sS}, 7
s_add_u32 s{sT0}, s{sT0}, 8192
v_add_u32 v13, s{sT0}, v13
s_add_u32 s{sT0}, s{sT0}, 4096
v_mov_b32 v14, s{sT0}
s_waitcnt lgkmcnt(3)""")
    for r in range(4): a(f"v_add_f32 v{16+r}, v{16+r}, v{20+r}")
    a("s_waitcnt lgkmcnt(1)")
    for r in range(4): a(f"v_add_f32 v{24+r}, v{24+r}, v{28+r}")
    for r in range(4): a(f"v_add_f32 v{16+r}, v{16+r}, v{24+r}")
    tag(16)
    a(f"""global_store_dwordx4 v13, v[16:19], s[{sG}:{sG+1}]
s_waitcnt lgkmcnt(0)
v_add_f32 v8, v8, v9
v_add_f32 v10, v10, v11
v_add_f32 v3, v8, v10""")
    a(f"v_bfi_b32 v8, 63, s{sTg}, v2\nv_bfi_b32 v9, 63, s{sTg+1}, v3\nv_mov_b32 v10, s{sE}\nv_mov_b32 v11, s{sE}")
    a(f"""s_mov_b64 exec, 1
global_store_dwordx4 v14, v[8:11], s[{sG}:{sG+1}]""")
    if dual:
        a("global_store_dwordx4 v14, v[8:11], s[62:63] sc1\ns_mov_b32 exec_lo, -1\nglobal_store_dwordx4 v13, v[16:19], s[62:63] sc1")
    stamp(9)
    a(f"L_mdone:\ns_mov_b64 exec, -1")
    if stamps: a(f"s_add_u32 s{sW}, s{sW}, 4")
    a("L_done:")
    if stamps:
        a("s_waitcnt vmcnt(0)")
        stamp(14)
        a("s_waitcnt lgkmcnt(0)\nv_mov_b32 v4, 0")
        for n in range(15): a(f"v_writelane_b32 v4, s{64+2*n}, {n}")
        a(f"v_writelane_b32 v4, s{sCnt}, 15")
        a(f"""s_lshl_b32 s{sT0}, s2, 3
s_add_u32 s{sT0}, s{sT0}, s{sW}
s_lshl_b32 s{sT0}, s{sT0}, 8
s_add_u32 s{sT0}, s{sT0}, 0x1000000
v_lshl_add_u32 v5, v0, 2, s{sT0}
global_store_dword v5, v4, s[26:27]""")
        if dbgwave is not None:
            a(f"""s_lshl_b32 s{sT0}, s2, 3
s_add_u32 s{sT0}, s{sT0}, s{sW}
s_cmp_eq_u32 s{sT0}, {dbgwave}
s_cbranch_scc0 L_end
v_subrev_u32 v4, s64, v4
v_lshlrev_b32 v5, 2, v0
s_mov_b64 exec, 0x7fff
global_store_dword v5, v4, s[24:25]""")
    a("L_end:\ns_endpgm")
    o.append(f""".section .rodata,"a"
.p2align 6
.amdhsa_kernel {KN}
  .amdhsa_next_free_vgpr 160
  .amdhsa_next_free_sgpr 102
  .amdhsa_accum_offset 160
  .amdhsa_group_segment_fixed_size 0
  .amdhsa_kernarg_size 96
  .amdhsa_user_sgpr_count 2
  .amdhsa_user_sgpr_kernarg_segment_ptr 1
  .amdhsa_system_sgpr_workgroup_id_x 1
  .amdhsa_float_denorm_mode_32 3
.end_amdhsa_kernel""")
    txt = "\n".join(o)
    if stamps:
        import re
        txt = re.sub(r"lgkmcnt\(\d+\)", "lgkmcnt(0)", txt)
    return pad(txt) + "\n"
if __name__ == "__main__":
    kw = eval("dict(" + (sys.argv[2] if len(sys.argv) > 2 else "") + ")")
    open(sys.argv[1], "w").write(gen(**kw))
ROLES = {"front": slice(0, 4), "main": slice(4, 8)}
```
